```python
import torch

def _softmax(x, axis=-1):
    return torch.softmax(x, dim=axis)
def _gelu(x):
    return torch.nn.functional.gelu(x, approximate="tanh")
def _silu(x):
    return torch.nn.functional.silu(x)
def _sigmoid(x):
    return torch.sigmoid(x)
def _layernorm(x, axis=-1, eps=1e-5):
    m = x.mean(dim=axis, keepdim=True)
    v = x.var(dim=axis, keepdim=True, unbiased=False)
    return (x - m) / torch.sqrt(v + eps)
def _scatter_add(tgt, idx, src, axis=0):
    return tgt.clone().index_add_(axis, idx, src)
def _segment_sum(src, seg, n):
    out = torch.zeros((n,) + src.shape[1:], dtype=src.dtype)
    return out.index_add_(0, seg, src)
def _pad(x, pw):
    flat = tuple(v for pair in reversed(pw) for v in pair)
    return torch.nn.functional.pad(x, flat)

kernel_name = 'recurrent_scan__mha_block_cached__mixer_token_mlp__decode'

def setup_inputs():

    _w = (lambda a: (lambda t: t.to(torch.bfloat16) if t.is_floating_point() else t)(torch.as_tensor(a)))
    def _A_setup():
        B, Sq, D = 8, 1, 512
        H, Sk, Dh = 32, 8192, 128
        return {
            "x": _w((lambda *s: torch.randn(*s, dtype=torch.bfloat16) * 0.4)(B, Sq, D)),
            "k_cache": _w((lambda *s: torch.randn(*s, dtype=torch.bfloat16) * 1.6)(B, H, Sk, Dh)),
            "v_cache": _w((lambda *s: torch.randn(*s, dtype=torch.bfloat16) * 1.6)(B, H, Sk, Dh)),
            "wq": _w((lambda *s: torch.randn(*s, dtype=torch.bfloat16) * 1.6)(D, H * Dh) * (D ** -0.5)),
            "wo": _w((lambda *s: torch.randn(*s, dtype=torch.bfloat16) * 1.6)(H * Dh, D) * ((H * Dh) ** -0.5)),
        }
    _A_in = _A_setup()

    def _B_setup():
        B, S, D, F = 8, 1, 512, 1792
        return {
            "x": _w((lambda *s: torch.randn(*s, dtype=torch.bfloat16) * 0.4)(B, S, D)),
            "w1": _w((lambda *s: torch.randn(*s, dtype=torch.bfloat16) * 1.6)(S, F) * (S ** -0.5)),
            "b1": _w((lambda *s: torch.randn(*s, dtype=torch.bfloat16) * 1.6)(F) * 0.02),
            "w2": _w((lambda *s: torch.randn(*s, dtype=torch.bfloat16) * 1.6)(F, S) * (F ** -0.5)),
            "b2": _w((lambda *s: torch.randn(*s, dtype=torch.bfloat16) * 1.6)(S) * 0.02),
        }
    _B_in = _B_setup()

    return {
        "A_x": _A_in["x"],
        "A_k_cache": _A_in["k_cache"],
        "A_v_cache": _A_in["v_cache"],
        "A_wq": _A_in["wq"],
        "A_wo": _A_in["wo"],
        "B_x": _B_in["x"],
        "B_w1": _B_in["w1"],
        "B_b1": _B_in["b1"],
        "B_w2": _B_in["w2"],
        "B_b2": _B_in["b2"],
    }

def reference(A_x, A_k_cache, A_v_cache, A_wq, A_wo, B_x, B_w1, B_b1, B_w2, B_b2):
    def _A_ref(x, k_cache, v_cache, wq, wo):
        B, Sq, D = x.shape
        H, Dh = 32, 128
        q = (lambda x, *d: x.permute(*d))((x @ wq).reshape(B, Sq, H, Dh), 0, 2, 1, 3)
        scores = torch.einsum("bhqd,bhkd->bhqk", q, k_cache) * (Dh ** -0.5)
        p = _softmax(scores, axis=-1)
        o = torch.einsum("bhqk,bhkd->bhqd", p, v_cache)
        return (lambda x, *d: x.permute(*d))(o, 0, 2, 1, 3).reshape(B, Sq, H * Dh) @ wo

    def _B_ref(x, w1, b1, w2, b2):
        B, S, D = x.shape
        h = _layernorm(x, axis=-1)
        u = torch.einsum("bsd,sf->bdf", h, w1) + b1
        u = _gelu(u)
        y = torch.einsum("bdf,fs->bds", u, w2) + b2
        return (lambda x, *d: x.permute(*d))(y, 0, 2, 1)

    x = A_x
    xn = _layernorm(x, axis=-1)
    s = _A_ref(xn, A_k_cache, A_v_cache, A_wq, A_wo)
    g = _silu(_B_ref(xn, B_w1, B_b1, B_w2, B_b2))
    return x + s * g
```

```python
import sys, struct
NAME = "recurrent_scan__mha_block_cached__mixer_token_mlp__decode"

def f32(x): return "0x%08x" % struct.unpack("<I", struct.pack("<f", x))[0]

import math
SCALE = f32(128 ** -0.5)
LOG2E = f32(math.log2(math.e))
GC0 = -2.0 * math.sqrt(2.0 / math.pi) * math.log2(math.e)
GC1 = GC0 * 0.044715

L_QP = 0
L_ST = 2048
L_OP = 4096
L_SC = 8192
LDS_BYTES = L_SC + 32768 + 512
WS_PART = 0
WS_GATE = 512 * 1024
WS_BYTES = WS_GATE + 16384

def gen(RG=8, DG=4, PDG=None, kname=NAME + "_kernel", stamps=False, pol="nt"):
    if PDG is None: PDG = DG
    out = []
    def A(s): out.append("    " + s)
    def LBL(s): out.append(s + ":")
    L = lambda s: f"L_{s}"

    vLane = 1
    vMask = [4, 5, 6, 7]
    sWave = 3
    sB, sH = 42, 43
    def nop(n): A(f"s_nop {n}")

    def wave_reduce(v, op, dst, st=60):
        for r in (8, 4, 2, 1):
            nop(1)
            A(f"v_{op}_f32_dpp v{v}, v{v}, v{v} row_ror:{r} row_mask:0xf bank_mask:0xf")
        nop(0)
        for i in range(4):
            A(f"v_readlane_b32 s{st+i}, v{v}, {16*i}")
        nop(0)
        A(f"v_mov_b32 v{dst}, s{st}")
        A(f"v_{op}_f32 v{dst}, s{st+1}, v{dst}")
        A(f"v_{op}_f32 v{dst}, s{st+2}, v{dst}")
        A(f"v_{op}_f32 v{dst}, s{st+3}, v{dst}")

    def rbf(dst, src):
        A(f"v_cvt_pk_bf16_f32 v{dst}, v{src}, v{src}")
        A(f"v_and_b32 v{dst}, 0xffff0000, v{dst}")

    A("s_cmp_ge_u32 s2, 256")
    A(f"s_cbranch_scc1 {L('end')}")
    A("s_load_dwordx16 s[16:31], s[0:1], 0")
    A("s_load_dwordx8 s[32:39], s[0:1], 64")
    A("s_load_dwordx2 s[40:41], s[0:1], 96")
    A("v_lshrrev_b32 v2, 6, v0")
    A(f"v_and_b32 v{vLane}, 63, v0")
    A(f"v_readfirstlane_b32 s{sWave}, v2")
    A(f"s_lshr_b32 s{sB}, s2, 5")
    A(f"s_and_b32 s{sH}, s2, 31")
    A(f"v_and_b32 v8, 1, v{vLane}")
    A("v_lshlrev_b32 v8, 4, v8")
    A("v_mov_b32 v9, 0xffff")
    A("v_lshlrev_b32 v8, v8, v9")
    A(f"v_bfe_u32 v9, v{vLane}, 1, 3")
    for m in range(4):
        A(f"v_cmp_eq_u32 vcc, {m}, v9")
        nop(1)
        A(f"v_cndmask_b32 v{vMask[m]}, 0, v8, vcc")
    A(f"s_cmp_ge_u32 s{sWave}, 4")
    A(f"s_cbranch_scc1 {L('helper')}")

    vKoff, vVoff = 2, 3
    vM, vLs, vS = 8, 9, 10
    vT = [11, 12, 13, 14, 15]
    D = 16
    O = 20
    vP = [24, 25]
    vS2 = 26
    vLds = 28
    vMg, vRl = 29, 30
    BQ = 32
    RING = 64
    TMP = RING + RG * 16
    sK, sV = 44, 48
    sKpos, sVpos, sCnt = 52, 53, 54
    STEP = 16384

    A(f"v_and_b32 v{vKoff}, 3, v{vLane}")
    A(f"v_lshlrev_b32 v{vKoff}, 4, v{vKoff}")
    A(f"v_bfe_u32 v10, v{vLane}, 2, 2")
    A(f"v_lshl_add_u32 v{vKoff}, v10, 8, v{vKoff}")
    A(f"v_lshrrev_b32 v10, 4, v{vLane}")
    A(f"v_lshl_add_u32 v{vKoff}, v10, 6, v{vKoff}")
    A(f"v_lshlrev_b32 v{vVoff}, 4, v{vLane}")
    A("s_lshl_b32 s55, s2, 21")
    A(f"s_lshl_b32 s{sKpos}, s{sWave}, 12")
    A(f"s_mov_b32 s{sVpos}, s{sKpos}")
    A("s_waitcnt lgkmcnt(0)")
    A(f"s_add_u32 s{sK}, s18, s55"); A(f"s_addc_u32 s{sK+1}, s19, 0")
    A(f"s_mov_b32 s{sK+2}, 0x200000"); A(f"s_mov_b32 s{sK+3}, 0x20000")
    A(f"s_add_u32 s{sV}, s20, s55"); A(f"s_addc_u32 s{sV+1}, s21, 0")
    A(f"s_mov_b32 s{sV+2}, 0x200000"); A(f"s_mov_b32 s{sV+3}, 0x20000")

    def issue(kind, slot):
        srd, pos, vo = (sK, sKpos, vKoff) if kind == "k" else (sV, sVpos, vVoff)
        for t in range(4):
            r = RING + slot * 16 + t * 4
            A(f"buffer_load_dwordx4 v[{r}:{r+3}], v{vo}, s[{srd}:{srd+3}], s{pos} offen offset:{t*1024} {pol}")
        A(f"s_add_u32 s{pos}, s{pos}, {STEP}")

    for j in range(RG):
        if j >= PDG:
            A(f"s_waitcnt vmcnt({4*(PDG-1)})")
        issue("k", j)
    A(f"v_mov_b32 v{vM}, 0xff7fffff")
    A(f"v_mov_b32 v{vLs}, 0")
    A(f"v_mov_b32 v{vS}, 0")
    A(f"s_lshl_b32 s55, s{sWave}, 13")
    A(f"s_add_u32 s55, s55, {L_SC}")
    A(f"v_lshl_add_u32 v{vLds}, v{vLane}, 2, s55")
    for r in range(4): A(f"v_mov_b32 v{O+r}, 0")
    A(f"v_lshrrev_b32 v{vT[0]}, 2, v{vLane}")
    A(f"v_lshlrev_b32 v{vT[0]}, 5, v{vT[0]}")
    A(f"v_and_b32 v{vT[1]}, 3, v{vLane}")
    A("s_barrier")
    for w in range(4):
        for hlf in range(2):
            r = TMP + w * 8 + hlf * 4
            A(f"ds_read_b128 v[{r}:{r+3}], v{vT[0]} offset:{L_QP + w*512 + hlf*16}")
    A("s_waitcnt lgkmcnt(0)")
    for e in range(8):
        A(f"v_add_f32 v{TMP+e}, v{TMP+e}, v{TMP+8+e}")
        A(f"v_add_f32 v{TMP+16+e}, v{TMP+16+e}, v{TMP+24+e}")
    for e in range(8):
        A(f"v_add_f32 v{TMP+e}, v{TMP+e}, v{TMP+16+e}")
    for m in range(4):
        A(f"v_cvt_pk_bf16_f32 v{TMP+8+m}, v{TMP+2*m}, v{TMP+2*m+1}")
    for t in range(4):
        A(f"v_cmp_eq_u32 vcc, {t}, v{vT[1]}")
        nop(1)
        for m in range(4):
            A(f"v_cndmask_b32 v{BQ+4*t+m}, 0, v{TMP+8+m}, vcc")
    nop(1)

    def kstep(n, wait, iss):
        slot = n % RG
        u = n % 4
        A(f"s_waitcnt vmcnt({wait})")
        pre = iss is not None and iss[1] != slot
        if pre: issue(*iss)
        for t in range(4):
            r = RING + slot * 16 + t * 4
            c = "0" if t == 0 else f"v[{D}:{D+3}]"
            A(f"v_mfma_f32_16x16x32_bf16 v[{D}:{D+3}], v[{r}:{r+3}], v[{BQ+4*t}:{BQ+4*t+3}], {c}")
        if iss is not None and not pre:
            issue(*iss)
            nop(3)
        else:
            nop(7)
        a, b, c = u ^ 1, u ^ 2, u ^ 3
        A(f"v_add_f32_dpp v{vT[0]}, v{D+b}, v{D+u} row_ror:8 row_mask:0xf bank_mask:0xf")
        A(f"v_add_f32_dpp v{vT[1]}, v{D+c}, v{D+a} row_ror:8 row_mask:0xf bank_mask:0xf")
        nop(1)
        A(f"v_add_f32_dpp v{vS}, v{vT[1]}, v{vT[0]} row_ror:{4 if u & 1 else 12} row_mask:0xf bank_mask:{hex(1 << u)}")
        if u == 3:
            rbf(vT[2], vS)
            A(f"v_mul_f32 v{vT[2]}, {SCALE}, v{vT[2]}")
            rbf(vT[2], vT[2])
            A(f"ds_write_b32 v{vLds}, v{vT[2]} offset:{(n//4)*256}")
            A(f"v_max_f32 v{vT[3]}, v{vM}, v{vT[2]}")
            A(f"v_sub_f32 v{vT[0]}, v{vM}, v{vT[3]}")
            A(f"v_sub_f32 v{vT[1]}, v{vT[2]}, v{vT[3]}")
            A(f"v_mul_f32 v{vT[0]}, {LOG2E}, v{vT[0]}")
            A(f"v_mul_f32 v{vT[1]}, {LOG2E}, v{vT[1]}")
            A(f"v_exp_f32 v{vT[0]}, v{vT[0]}")
            A(f"v_exp_f32 v{vT[1]}, v{vT[1]}")
            A(f"v_mov_b32 v{vM}, v{vT[3]}")
            A(f"v_fma_f32 v{vLs}, v{vLs}, v{vT[0]}, v{vT[1]}")

    NIT = 128 // RG
    assert RG % 4 == 0 and 128 % RG == 0 and NIT >= 3
    def sched_iter(stepf, j0, last, kind_of, fill_first):
        for n in range(RG):
            j = j0 + n
            want = j + DG
            iss = None
            if want > last:
                assert want == last + 1
                iss = (kind_of(want), want % RG)
            wait = 4 * (last - j)
            stepf(n, wait, iss)
            if iss is not None: last = want
        return last
    kind_of = lambda j: "k" if j < 128 else "v"
    last = RG - 1
    last = sched_iter(kstep, 0, last, kind_of, True)
    A(f"v_add_u32 v{vLds}, {RG*64}, v{vLds}")
    assert last == RG - 1 + DG
    A(f"s_mov_b32 s{sCnt}, {NIT-2}")
    LBL(L("kloop"))
    l2 = sched_iter(kstep, RG, last, kind_of, False)
    assert l2 == last + RG
    A(f"v_add_u32 v{vLds}, {RG*64}, v{vLds}")
    A(f"s_sub_u32 s{sCnt}, s{sCnt}, 1")
    A(f"s_cmp_lg_u32 s{sCnt}, 0")
    A(f"s_cbranch_scc1 {L('kloop')}")
    last = last + RG * (NIT - 2)
    last = sched_iter(kstep, 128 - RG, last, kind_of, False)
    assert last == 127 + DG
    for j in range(last + 1, 128 + RG):
        issue("v", j % RG)
    last = 127 + RG
    A(f"v_subrev_u32 v{vLds}, {8192 - RG*64}, v{vLds}")
    A(f"v_mov_b32 v{vT[0]}, v{vM}")
    wave_reduce(vT[0], "max", vT[2])
    A(f"v_sub_f32 v{vT[0]}, v{vM}, v{vT[2]}")
    A(f"v_mul_f32 v{vT[0]}, {LOG2E}, v{vT[0]}")
    A(f"v_exp_f32 v{vT[0]}, v{vT[0]}")
    nop(0)
    A(f"v_mul_f32 v{vT[0]}, v{vLs}, v{vT[0]}")
    wave_reduce(vT[0], "add", vT[3])
    A(f"v_mov_b32 v{D}, v{vT[2]}")
    A(f"v_mov_b32 v{D+1}, v{vT[3]}")
    A(f"s_lshl_b32 s55, s{sWave}, 3")
    A(f"v_mov_b32 v{vT[0]}, s55")
    A(f"v_mov_b32 v{vT[1]}, 0")
    A("s_mov_b64 exec, 1")
    A(f"ds_write_b64 v{vT[0]}, v[{D}:{D+1}] offset:{L_ST}")
    A("s_mov_b64 exec, -1")
    A(f"ds_read2st64_b32 v[{vS2}:{vS2+1}], v{vLds} offset0:0 offset1:1")
    A("s_waitcnt lgkmcnt(0)")
    A("s_barrier")
    A(f"ds_read_b128 v[{TMP}:{TMP+3}], v{vT[1]} offset:{L_ST}")
    A(f"ds_read_b128 v[{TMP+4}:{TMP+7}], v{vT[1]} offset:{L_ST+16}")
    A("s_waitcnt lgkmcnt(0)")
    A(f"v_max3_f32 v{vMg}, v{TMP}, v{TMP+2}, v{TMP+4}")
    A(f"v_max_f32 v{vMg}, v{vMg}, v{TMP+6}")
    for w in range(4):
        A(f"v_sub_f32 v{TMP+2*w}, v{TMP+2*w}, v{vMg}")
        A(f"v_mul_f32 v{TMP+2*w}, {LOG2E}, v{TMP+2*w}")
        A(f"v_exp_f32 v{TMP+2*w}, v{TMP+2*w}")
    nop(0)
    A(f"v_mul_f32 v{vT[0]}, v{TMP}, v{TMP+1}")
    for w in range(1, 4):
        A(f"v_fma_f32 v{vT[0]}, v{TMP+2*w}, v{TMP+2*w+1}, v{vT[0]}")
    A(f"v_rcp_f32 v{vRl}, v{vT[0]}")
    nop(0)
    A(f"v_fma_f32 v{vT[1]}, -v{vT[0]}, v{vRl}, 1.0")
    A(f"v_fma_f32 v{vRl}, v{vT[1]}, v{vRl}, v{vRl}")

    assert RG == 8, "V loop is written for 2 P registers per iteration"
    def vhead():
        A("s_waitcnt lgkmcnt(0)")
        for i in range(2): A(f"v_sub_f32 v{vP[i]}, v{vS2+i}, v{vMg}")
        for i in range(2): A(f"v_mul_f32 v{vP[i]}, {LOG2E}, v{vP[i]}")
        for i in range(2): A(f"v_exp_f32 v{vP[i]}, v{vP[i]}")
        A(f"v_add_u32 v{vLds}, 512, v{vLds}")
        for i in range(2): A(f"v_mul_f32 v{vP[i]}, v{vP[i]}, v{vRl}")
        for i in range(2): A(f"v_cvt_pk_bf16_f32 v{vP[i]}, v{vP[i]}, v{vP[i]}")
        A(f"ds_read2st64_b32 v[{vS2}:{vS2+1}], v{vLds} offset0:0 offset1:1")
        nop(0)
    def vstep(n, wait, iss):
        slot = n % RG
        u = n % 4
        p = vP[n // 4]
        for t in range(4):
            for m in range(4):
                A(f"v_and_b32_dpp v{BQ+4*t+m}, v{p}, v{vMask[m]} row_newbcast:{u*4+t} row_mask:0xf bank_mask:0xf")
        A(f"s_waitcnt vmcnt({wait})")
        pre = iss is not None and iss[1] != slot
        if pre: issue(*iss)
        else: nop(0)
        for t in range(4):
            r = RING + slot * 16 + t * 4
            A(f"v_mfma_f32_16x16x32_bf16 v[{O}:{O+3}], v[{BQ+4*t}:{BQ+4*t+3}], v[{r}:{r+3}], v[{O}:{O+3}]")
        if iss is not None and not pre: issue(*iss)
    kv = lambda j: "v"
    vhead()
    last = sched_iter(vstep, 128, last, kv, True)
    assert last == 128 + RG - 1 + DG
    A(f"s_mov_b32 s{sCnt}, {NIT-2}")
    LBL(L("vloop"))
    vhead()
    l2 = sched_iter(vstep, 128 + RG, last, kv, False)
    A(f"s_sub_u32 s{sCnt}, s{sCnt}, 1")
    A(f"s_cmp_lg_u32 s{sCnt}, 0")
    A(f"s_cbranch_scc1 {L('vloop')}")
    last = last + RG * (NIT - 2)
    vhead()
    for n in range(RG):
        j = 256 - RG + n
        want = j + DG
        iss = None
        if want > last and want < 256:
            iss = ("v", want % RG)
        vstep(n, 4 * (last - j), iss)
        if iss is not None: last = want
    assert last == 255
    A(f"v_and_b32 v{vT[0]}, 15, v{vLane}")
    A(f"v_lshlrev_b32 v{vT[0]}, 5, v{vT[0]}")
    A(f"v_lshrrev_b32 v{vT[1]}, 4, v{vLane}")
    A(f"v_lshl_add_u32 v{vT[0]}, v{vT[1]}, 4, v{vT[0]}")
    A(f"s_lshl_b32 s55, s{sWave}, 9")
    A(f"v_add_u32 v{vT[0]}, s55, v{vT[0]}")
    A("s_mov_b32 exec_hi, 0")
    nop(2)
    A(f"ds_write_b128 v{vT[0]}, v[{O}:{O+3}] offset:{L_OP}")
    A("s_waitcnt lgkmcnt(0)")
    A("s_barrier")
    A("s_endpgm")

    LBL(L("helper"))
    sHW = 44
    sX, sW, sWS, sDbg, sOut = 48, 52, 64, 68, 72
    sOff = 45
    vG, vC = 2, 3
    vX4 = 8
    vXs = 12
    vXf = 16
    vMu, vMb, vDen, vRd = 24, 25, 26, 27
    vA = 28
    vAcc = 36
    hT = [40, 41, 42, 43, 44, 45, 46, 47]
    vWoff = 48
    vPO = 49
    vH = 52
    vGres = 56
    vGc0, vGc1 = 57, 58
    vFin = 60
    vXo = 50
    W = 64
    PW = 192
    A("s_setprio 3")
    A(f"s_sub_u32 s{sHW}, s{sWave}, 4")
    A(f"v_lshrrev_b32 v{vG}, 4, v{vLane}")
    A(f"v_and_b32 v{vC}, 15, v{vLane}")
    A(f"v_lshlrev_b32 v{hT[0]}, 4, v{vLane}")
    A(f"v_lshlrev_b32 v{hT[1]}, 3, v{vC}")
    A(f"v_lshl_add_u32 v{hT[1]}, v{vG}, 1, v{hT[1]}")
    A(f"v_lshlrev_b32 v{vWoff}, 4, v{vC}")
    A(f"v_lshl_add_u32 v{vWoff}, v{vG}, 13, v{vWoff}")
    A(f"v_lshlrev_b32 v{vPO}, 5, v{vC}")
    A(f"v_lshl_add_u32 v{vPO}, v{vG}, 4, v{vPO}")
    A(f"s_lshl_b32 s46, s{sB}, 10")
    A(f"s_lshl_b32 s47, s{sHW}, 8")
    A(f"s_lshl_b32 s{sOff}, s{sHW}, 20")
    A(f"s_lshl_b32 s56, s{sH}, 8")
    A(f"s_add_u32 s{sOff}, s{sOff}, s56")
    A("s_waitcnt lgkmcnt(0)")
    A(f"s_add_u32 s{sX}, s16, s46"); A(f"s_addc_u32 s{sX+1}, s17, 0")
    A(f"s_mov_b32 s{sX+2}, 1024"); A(f"s_mov_b32 s{sX+3}, 0x20000")
    A(f"s_mov_b32 s{sW}, s22"); A(f"s_mov_b32 s{sW+1}, s23")
    A(f"s_mov_b32 s{sW+2}, 0x400000"); A(f"s_mov_b32 s{sW+3}, 0x20000")
    A(f"buffer_load_dwordx4 v[{vX4}:{vX4+3}], v{hT[0]}, s[{sX}:{sX+3}], 0 offen")
    A(f"buffer_load_ushort v{vXs}, v{hT[1]}, s[{sX}:{sX+3}], s47 offen")
    A(f"buffer_load_ushort v{vXs+1}, v{hT[1]}, s[{sX}:{sX+3}], s47 offen offset:128")
    for i in range(32):
        A(f"buffer_load_dwordx4 v[{W+4*i}:{W+4*i+3}], v{vWoff}, s[{sW}:{sW+3}], s{sOff} offen")
        if i < 31: A(f"s_add_u32 s{sOff}, s{sOff}, 32768")
    A(f"s_lshl_b32 s56, s{sH}, 5")
    A(f"s_lshl_b32 s57, s{sHW}, 3")
    A("s_add_u32 s56, s56, s57")
    A(f"s_add_u32 s58, s{sX}, s56"); A(f"s_addc_u32 s59, s{sX+1}, 0")
    A("s_load_dwordx2 s[76:77], s[58:59], 0")
    A("s_load_dword s78, s[34:35], 0")

    def unpack8(src, dst):
        for i in range(4):
            A(f"v_lshlrev_b32 v{dst+2*i}, 16, v{src+i}")
            A(f"v_and_b32 v{dst+2*i+1}, 0xffff0000, v{src+i}")
    def ln_stats(xf, mb, den, rd):
        t0, t1, t2 = hT[0], hT[1], hT[2]
        A(f"v_add_f32 v{t0}, v{xf}, v{xf+1}")
        A(f"v_add_f32 v{t1}, v{xf+2}, v{xf+3}")
        A(f"v_add_f32 v{t2}, v{xf+4}, v{xf+5}")
        A(f"v_add_f32 v{t0}, v{t0}, v{t1}")
        A(f"v_add_f32 v{t1}, v{xf+6}, v{xf+7}")
        A(f"v_add_f32 v{t1}, v{t1}, v{t2}")
        A(f"v_add_f32 v{t0}, v{t0}, v{t1}")
        wave_reduce(t0, "add", vMu)
        A(f"v_mul_f32 v{vMu}, {f32(1/512)}, v{vMu}")
        A(f"v_sub_f32 v{t1}, v{xf}, v{vMu}")
        A(f"v_mul_f32 v{t0}, v{t1}, v{t1}")
        for i in range(1, 8):
            A(f"v_sub_f32 v{t1}, v{xf+i}, v{vMu}")
            A(f"v_fma_f32 v{t0}, v{t1}, v{t1}, v{t0}")
        wave_reduce(t0, "add", den)
        A(f"v_mul_f32 v{den}, {f32(1/512)}, v{den}")
        rbf(mb, vMu)
        rbf(den, den)
        A(f"v_add_f32 v{den}, {f32(1e-5)}, v{den}")
        rbf(den, den)
        A(f"v_sqrt_f32 v{den}, v{den}")
        nop(0)
        rbf(den, den)
        A(f"v_rcp_f32 v{rd}, v{den}")
        nop(0)
    def ln_apply(v, mb, den, rd, tmp):
        A(f"v_sub_f32 v{v}, v{v}, v{mb}")
        rbf(v, v)
        A(f"v_mul_f32 v{tmp}, v{v}, v{rd}")
        A(f"v_fma_f32 v{v}, -v{tmp}, v{den}, v{v}")
        A(f"v_fma_f32 v{v}, v{v}, v{rd}, v{tmp}")

    A("s_waitcnt vmcnt(34)")
    unpack8(vX4, vXf)
    ln_stats(vXf, vMb, vDen, vRd)
    A("s_waitcnt vmcnt(32)")
    for k in range(2):
        A(f"v_lshlrev_b32 v{vXs+k}, 16, v{vXs+k}")
        ln_apply(vXs + k, vMb, vDen, vRd, hT[0])
        A(f"v_cvt_pk_bf16_f32 v{vXs+k}, v{vXs+k}, v{vXs+k}")
    nop(1)
    def diag_matvec(src, waits):
        def mkA(i):
            for m in range(4):
                A(f"v_and_b32_dpp v{vA+4*(i&1)+m}, v{src+(i>>4)}, v{vMask[m]} row_newbcast:{i&15} row_mask:0xf bank_mask:0xf")
        mkA(0)
        for i in range(32):
            if i < 31: mkA(i + 1)
            else: nop(1)
            if waits: A(f"s_waitcnt vmcnt({31-i})")
            c = "0" if i == 0 else f"v[{vAcc}:{vAcc+3}]"
            a = vA + 4 * (i & 1)
            A(f"v_mfma_f32_16x16x32_bf16 v[{vAcc}:{vAcc+3}], v[{a}:{a+3}], v[{W+4*i}:{W+4*i+3}], {c}")
    diag_matvec(vXs, True)
    A(f"s_lshl_b32 s56, s{sHW}, 9")
    A(f"v_add_u32 v{hT[0]}, s56, v{vPO}")
    A("s_mov_b32 exec_hi, 0")
    nop(5)
    A(f"ds_write_b128 v{hT[0]}, v[{vAcc}:{vAcc+3}] offset:{L_QP}")
    A("s_mov_b32 exec_hi, -1")
    A("s_waitcnt lgkmcnt(0)")
    A("s_barrier")
    A("s_setprio 0")
    A(f"s_mov_b32 s{sWS}, s40"); A(f"s_mov_b32 s{sWS+1}, s41")
    A(f"s_mov_b32 s{sWS+2}, {WS_BYTES}"); A(f"s_mov_b32 s{sWS+3}, 0x20000")
    A(f"s_mov_b32 s{sDbg}, s38"); A(f"s_mov_b32 s{sDbg+1}, s39")
    A(f"s_mov_b32 s{sDbg+2}, 256"); A(f"s_mov_b32 s{sDbg+3}, 0x20000")
    A(f"s_mov_b32 s{sOut}, s36"); A(f"s_mov_b32 s{sOut+1}, s37")
    A(f"s_mov_b32 s{sOut+2}, 8192"); A(f"s_mov_b32 s{sOut+3}, 0x20000")
    A(f"s_lshl_b32 s79, s{sB}, 2")
    A(f"s_add_u32 s79, s79, s{sHW}")
    A("s_lshl_b32 s79, s79, 14")
    A(f"s_lshl_b32 s80, s{sH}, 9")
    A("s_add_u32 s80, s80, s79")
    for r in range(4): A(f"v_mov_b32 v{vAcc+r}, -1")
    A("s_mov_b32 exec_hi, 0")
    A(f"buffer_store_dwordx4 v[{vAcc}:{vAcc+3}], v{vPO}, s[{sWS}:{sWS+3}], s80 offen sc1")
    A("s_mov_b32 exec_hi, -1")
    A(f"v_lshlrev_b32 v{hT[7]}, 3, v{vLane}")
    for a_i, ptr in enumerate((28, 30, 32)):
        A(f"s_mov_b32 s{sW}, s{ptr}"); A(f"s_mov_b32 s{sW+1}, s{ptr+1}")
        A(f"s_mov_b32 s{sW+2}, 3584"); A(f"s_mov_b32 s{sW+3}, 0x20000")
        for i in range(7):
            r = PW + a_i * 14 + 2 * i
            A(f"buffer_load_dwordx2 v[{r}:{r+1}], v{hT[7]}, s[{sW}:{sW+3}], 0 offen offset:{i*512}")
    for i in range(8):
        ln_apply(vXf + i, vMb, vDen, vRd, hT[0])
        rbf(vXf + i, vXf + i)
    A("s_lshl_b32 s56, s76, 16"); A(f"v_mov_b32 v{vH}, s56")
    A("s_and_b32 s56, s76, 0xffff0000"); A(f"v_mov_b32 v{vH+1}, s56")
    A("s_lshl_b32 s56, s77, 16"); A(f"v_mov_b32 v{vH+2}, s56")
    A("s_and_b32 s56, s77, 0xffff0000"); A(f"v_mov_b32 v{vH+3}, s56")
    A("s_lshl_b32 s78, s78, 16")
    for j in range(4):
        ln_apply(vH + j, vMb, vDen, vRd, hT[0])
        rbf(vH + j, vH + j)
    ln_stats(vXf, vMb, vDen, vRd)
    for j in range(4):
        ln_apply(vH + j, vMb, vDen, vRd, hT[0])
        rbf(vH + j, vH + j)
    A(f"v_mov_b32 v{vGc0}, {f32(GC0)}")
    A(f"v_mov_b32 v{vGc1}, {f32(GC1)}")
    A(f"v_mov_b32 v{vGres}, 0")
    A("s_waitcnt vmcnt(0)")
    for a_i in range(3):
        for i in range(14):
            A(f"v_lshlrev_b32 v{W+a_i*28+2*i}, 16, v{PW+a_i*14+i}")
            A(f"v_and_b32 v{W+a_i*28+2*i+1}, 0xffff0000, v{PW+a_i*14+i}")
    A("s_mov_b32 s57, 0")
    LBL(L("gate"))
    u0, u1, t0, t1, pk, acc = hT[0], hT[1], hT[2], hT[3], hT[4], hT[5]
    A(f"v_mov_b32 v{acc}, 0")
    for i in range(14):
        w1, b1, w2 = W + 2 * i, W + 28 + 2 * i, W + 56 + 2 * i
        A(f"v_mul_f32 v{u0}, v{vH}, v{w1}")
        A(f"v_mul_f32 v{u1}, v{vH}, v{w1+1}")
        A(f"v_cvt_pk_bf16_f32 v{pk}, v{u0}, v{u1}")
        A(f"v_lshlrev_b32 v{u0}, 16, v{pk}")
        A(f"v_and_b32 v{u1}, 0xffff0000, v{pk}")
        A(f"v_add_f32 v{u0}, v{u0}, v{b1}")
        A(f"v_add_f32 v{u1}, v{u1}, v{b1+1}")
        A(f"v_cvt_pk_bf16_f32 v{pk}, v{u0}, v{u1}")
        A(f"v_lshlrev_b32 v{u0}, 16, v{pk}")
        A(f"v_and_b32 v{u1}, 0xffff0000, v{pk}")
        A(f"v_mul_f32 v{t0}, v{u0}, v{u0}")
        A(f"v_mul_f32 v{t1}, v{u1}, v{u1}")
        A(f"v_fma_f32 v{t0}, v{t0}, v{vGc1}, v{vGc0}")
        A(f"v_fma_f32 v{t1}, v{t1}, v{vGc1}, v{vGc0}")
        A(f"v_mul_f32 v{t0}, v{t0}, v{u0}")
        A(f"v_mul_f32 v{t1}, v{t1}, v{u1}")
        A(f"v_exp_f32 v{t0}, v{t0}")
        A(f"v_exp_f32 v{t1}, v{t1}")
        A(f"v_add_f32 v{t0}, 1.0, v{t0}")
        A(f"v_add_f32 v{t1}, 1.0, v{t1}")
        A(f"v_rcp_f32 v{t0}, v{t0}")
        A(f"v_rcp_f32 v{t1}, v{t1}")
        A(f"v_mul_f32 v{u0}, v{u0}, v{t0}")
        A(f"v_mul_f32 v{u1}, v{u1}, v{t1}")
        A(f"v_cvt_pk_bf16_f32 v{pk}, v{u0}, v{u1}")
        A(f"v_lshlrev_b32 v{u0}, 16, v{pk}")
        A(f"v_and_b32 v{u1}, 0xffff0000, v{pk}")
        A(f"v_fma_f32 v{acc}, v{u0}, v{w2}, v{acc}")
        A(f"v_fma_f32 v{acc}, v{u1}, v{w2+1}, v{acc}")
    wave_reduce(acc, "add", u0)
    rbf(u0, u0)
    A(f"v_add_f32 v{u0}, s78, v{u0}")
    rbf(u0, u0)
    A(f"v_mul_f32 v{t0}, {f32(-math.log2(math.e))}, v{u0}")
    A(f"v_exp_f32 v{t0}, v{t0}")
    nop(0)
    A(f"v_add_f32 v{t0}, 1.0, v{t0}")
    A(f"v_rcp_f32 v{t1}, v{t0}")
    nop(0)
    A(f"v_mul_f32 v{u1}, v{u0}, v{t1}")
    rbf(u1, u1)
    A(f"v_cmp_eq_u32 vcc, s57, v{vLane}")
    nop(1)
    A(f"v_cndmask_b32 v{vGres}, v{vGres}, v{u1}, vcc")
    A(f"v_mov_b32 v{vH}, v{vH+1}")
    A(f"v_mov_b32 v{vH+1}, v{vH+2}")
    A(f"v_mov_b32 v{vH+2}, v{vH+3}")
    A("s_add_u32 s57, s57, 1")
    A("s_cmp_lt_u32 s57, 4")
    A(f"s_cbranch_scc1 {L('gate')}")
    A(f"s_lshl_b32 s81, s{sB}, 11")
    A(f"s_add_u32 s81, s81, {WS_GATE}")
    A(f"s_lshl_b32 s56, s{sH}, 6")
    A(f"s_lshl_b32 s57, s{sHW}, 4")
    A("s_add_u32 s56, s56, s57")
    A("s_add_u32 s56, s56, s81")
    A(f"v_lshlrev_b32 v{hT[0]}, 2, v{vLane}")
    A("s_mov_b64 exec, 15")
    A(f"buffer_store_dword v{vGres}, v{hT[0]}, s[{sWS}:{sWS+3}], s56 offen sc1")
    A("s_mov_b64 exec, -1")
    A(f"s_mov_b32 s{sW}, s24"); A(f"s_mov_b32 s{sW+1}, s25")
    A(f"s_mov_b32 s{sW+2}, 0x400000"); A(f"s_mov_b32 s{sW+3}, 0x20000")
    A(f"v_lshlrev_b32 v{vWoff}, 4, v{vC}")
    A(f"v_lshl_add_u32 v{vWoff}, v{vG}, 10, v{vWoff}")
    A(f"s_lshl_b32 s{sOff}, s{sH}, 17")
    A(f"s_lshl_b32 s56, s{sHW}, 8")
    A(f"s_add_u32 s{sOff}, s{sOff}, s56")
    for i in range(32):
        A(f"buffer_load_dwordx4 v[{W+4*i}:{W+4*i+3}], v{vWoff}, s[{sW}:{sW+3}], s{sOff} offen")
        if i < 31: A(f"s_add_u32 s{sOff}, s{sOff}, 4096")
    A("s_waitcnt vmcnt(0)")
    A("s_barrier")
    A(f"s_lshl_b32 s82, s{sB}, 5")
    A(f"v_mov_b32 v{hT[0]}, 0")
    A(f"v_mov_b32 v{hT[1]}, 1")
    A(f"s_cmp_lg_u32 s{sHW}, 0")
    A(f"s_cbranch_scc1 {L('noarrive')}")
    A("s_mov_b64 exec, 1")
    A(f"buffer_atomic_add v{hT[1]}, v{hT[0]}, s[{sDbg}:{sDbg+3}], s82 offen")
    A("s_mov_b64 exec, -1")
    LBL(L("noarrive"))
    A(f"s_lshl_b32 s83, s{sB}, 2")
    A(f"s_add_u32 s83, s83, s{sHW}")
    A(f"s_cmp_lg_u32 s83, s{sH}")
    A(f"s_cbranch_scc1 {L('notcons1')}")
    A("s_mov_b32 s57, 0")
    LBL(L("cpoll"))
    A(f"buffer_load_dword v{hT[2]}, v{hT[0]}, s[{sDbg}:{sDbg+3}], s82 offen sc1")
    A("s_waitcnt vmcnt(0)")
    A(f"v_readfirstlane_b32 s56, v{hT[2]}")
    A("s_add_u32 s57, s57, 1")
    A("s_cmp_ge_u32 s57, 0x400000")
    A(f"s_cbranch_scc1 {L('cpoll_done')}")
    A("s_cmp_ge_u32 s56, 32")
    A(f"s_cbranch_scc1 {L('cpoll_done')}")
    A("s_sleep 32")
    A(f"s_branch {L('cpoll')}")
    LBL(L("cpoll_done"))
    A(f"v_and_b32 v{hT[2]}, 31, v{vLane}")
    A(f"v_lshlrev_b32 v{hT[3]}, 3, v{hT[2]}")
    A(f"v_lshlrev_b32 v{hT[2]}, 4, v{hT[2]}")
    A(f"s_lshl_b32 s56, s{sHW}, 9")
    A("s_add_u32 s56, s56, s81")
    A(f"buffer_load_dwordx4 v[{vFin}:{vFin+3}], v{hT[2]}, s[{sWS}:{sWS+3}], s56 offen sc1")
    A(f"buffer_load_dwordx2 v[{vXo}:{vXo+1}], v{hT[3]}, s[{sX}:{sX+3}], s47 offen")
    A("s_waitcnt vmcnt(0)")
    LBL(L("notcons1"))
    A(f"v_lshlrev_b32 v{hT[0]}, 4, v{vC}")
    A(f"v_lshl_add_u32 v{hT[0]}, v{vG}, 2, v{hT[0]}")
    A("s_setprio 3")
    A("s_barrier")
    for w in range(4):
        A(f"ds_read2st64_b32 v[{vXf+2*w}:{vXf+2*w+1}], v{hT[0]} offset0:{L_OP//256+2*w} offset1:{L_OP//256+2*w+1}")
    A("s_waitcnt lgkmcnt(0)")
    for k in range(2):
        A(f"v_add_f32 v{vXf+k}, v{vXf+k}, v{vXf+2+k}")
        A(f"v_add_f32 v{vXf+4+k}, v{vXf+4+k}, v{vXf+6+k}")
    for k in range(2):
        A(f"v_add_f32 v{vXf+k}, v{vXf+k}, v{vXf+4+k}")
    for k in range(2):
        A(f"v_cvt_pk_bf16_f32 v{vXs+k}, v{vXf+k}, v{vXf+k}")
    nop(1)
    diag_matvec(vXs, False)
    A("s_mov_b32 exec_hi, 0")
    nop(6)
    for r in range(4): A(f"v_min_u32 v{vAcc+r}, -2, v{vAcc+r}")
    A(f"buffer_store_dwordx4 v[{vAcc}:{vAcc+3}], v{vPO}, s[{sWS}:{sWS+3}], s80 offen sc1")
    A("s_mov_b32 exec_hi, -1")
    A(f"s_cmp_lg_u32 s83, s{sH}")
    A(f"s_cbranch_scc1 {L('end')}")
    A(f"v_lshlrev_b32 v{hT[0]}, 4, v{vLane}")
    A("s_mov_b32 s57, 0")
    LBL(L("gpoll"))
    A("s_mov_b32 s56, s79")
    for i in range(16):
        A(f"buffer_load_dwordx4 v[{W+4*i}:{W+4*i+3}], v{hT[0]}, s[{sWS}:{sWS+3}], s56 offen offset:{(i%4)*1024} sc1")
        if i % 4 == 3 and i < 15: A("s_add_u32 s56, s56, 4096")
    for i in range(1, 16):
        A(f"s_waitcnt vmcnt({15-i})")
        for r in range(4):
            src = f"v{W+r}" if i == 1 else f"v{vAcc+r}"
            A(f"v_add_f32 v{vAcc+r}, {src}, v{W+4*i+r}")
    A(f"v_add_f32 v{hT[1]}, v{vAcc}, v{vAcc+1}")
    A(f"v_add_f32 v{hT[2]}, v{vAcc+2}, v{vAcc+3}")
    A(f"v_cmp_u_f32 vcc, v{hT[1]}, v{hT[2]}")
    A("s_add_u32 s57, s57, 1")
    nop(3)
    A(f"s_cbranch_vccz {L('gdone')}")
    A(f"v_max3_u32 v{hT[1]}, v{W}, v{W+1}, v{W+2}")
    A(f"v_max_u32 v{hT[1]}, v{hT[1]}, v{W+3}")
    for i in range(2, 32):
        A(f"v_max3_u32 v{hT[1]}, v{hT[1]}, v{W+2*i}, v{W+2*i+1}")
    A(f"v_cmp_eq_u32 vcc, -1, v{hT[1]}")
    A("s_cmp_ge_u32 s57, 0x400000")
    A(f"s_cbranch_scc1 {L('gdone')}")
    nop(3)
    A(f"s_cbranch_vccnz {L('gpoll')}")
    LBL(L("gdone"))
    for r in range(4): A(f"v_mov_b32 v{hT[r]}, v{vAcc+r}")
    nop(1)
    for r in range(4): A(f"v_permlane32_swap_b32 v{hT[r]}, v{vAcc+r}")
    for r in range(4): A(f"v_add_f32 v{vAcc+r}, v{vAcc+r}, v{hT[r]}")
    for r in range(4): rbf(vAcc + r, vAcc + r)
    for r in range(4): A(f"v_mul_f32 v{vAcc+r}, v{vAcc+r}, v{vFin+r}")
    for r in range(4): rbf(vAcc + r, vAcc + r)
    A(f"v_lshlrev_b32 v{hT[0]}, 16, v{vXo}")
    A(f"v_and_b32 v{hT[1]}, 0xffff0000, v{vXo}")
    A(f"v_lshlrev_b32 v{hT[2]}, 16, v{vXo+1}")
    A(f"v_and_b32 v{hT[3]}, 0xffff0000, v{vXo+1}")
    for r in range(4): A(f"v_add_f32 v{vAcc+r}, v{vAcc+r}, v{hT[r]}")
    A(f"v_cvt_pk_bf16_f32 v{hT[4]}, v{vAcc}, v{vAcc+1}")
    A(f"v_cvt_pk_bf16_f32 v{hT[5]}, v{vAcc+2}, v{vAcc+3}")
    A(f"v_lshlrev_b32 v{hT[0]}, 3, v{vLane}")
    A("s_add_u32 s56, s46, s47")
    A("s_mov_b32 exec_hi, 0")
    A(f"buffer_store_dwordx2 v[{hT[4]}:{hT[5]}], v{hT[0]}, s[{sOut}:{sOut+3}], s56 offen")
    LBL(L("end"))
    A("s_endpgm")
    return "\n".join(out)

HEADER = open("cdna_kernels/" + NAME + ".s.ref").read().split("; Override launch geometry")[0]

def full(path, **kw):
    kname = NAME + "_kernel"
    body = gen(**kw)
    s = HEADER
    s += f"; @launch grid=(256,1,1) block=(512,1,1) lds={LDS_BYTES}\n"
    s += '.amdgcn_target "amdgcn-amd-amdhsa--gfx950"\n.text\n'
    s += f".globl {kname}\n.p2align 8\n.type {kname},@function\n{kname}:\n"
    s += body + "\n"
    s += f""".section .rodata,"a"
.p2align 6
.amdhsa_kernel {kname}
  .amdhsa_next_free_vgpr 256
  .amdhsa_next_free_sgpr 96
  .amdhsa_accum_offset 256
  .amdhsa_group_segment_fixed_size 0
  .amdhsa_kernarg_size 104
  .amdhsa_user_sgpr_count 2
  .amdhsa_user_sgpr_kernarg_segment_ptr 1
  .amdhsa_system_sgpr_workgroup_id_x 1
  .amdhsa_float_denorm_mode_32 3
.end_amdhsa_kernel
"""
    open(path, "w").write(s)

if __name__ == "__main__":
    kw = {}
    path = "cdna_kernels/" + NAME + ".s"
    for a in sys.argv[1:]:
        k, v = a.split("=")
        if k == "out": path = v
        else: kw[k] = int(v) if v.lstrip("-").isdigit() else v
    full(path, **kw)
```

```python
import sys, struct
NAME = "recurrent_scan__mha_block_cached__mixer_token_mlp__decode"

def f32(x): return "0x%08x" % struct.unpack("<I", struct.pack("<f", x))[0]

import math
SCALE = f32(128 ** -0.5)
LOG2E = f32(math.log2(math.e))
GC0 = -2.0 * math.sqrt(2.0 / math.pi) * math.log2(math.e)
GC1 = GC0 * 0.044715

L_QP = 0
L_ST = 2048
L_OP = 4096
L_SC = 8192
LDS_BYTES = L_SC + 32768 + 512
WS_PART = 0
WS_GATE = 512 * 1024
WS_BYTES = WS_GATE + 16384

def gen(RG=8, DL=8, PDL=None, HT=8, HW0=12, WOT=4, MIDL=None, kname=NAME + "_kernel", stamps=False, pol="nt", rot=1, sprio=1, GR=1, wpol="", nowo=0, nowq=0, kmap="quad"):
    if PDL is None: PDL = DL
    if MIDL is None: MIDL = 4 * RG
    R = 4 * RG
    out = []
    def A(s): out.append("    " + s)
    def LBL(s): out.append(s + ":")
    L = lambda s: f"L_{s}"

    vLane = 1
    vMask = [4, 5, 6, 7]
    sWave = 3
    sB, sH = 42, 43
    def nop(n): A(f"s_nop {n}")

    def wave_reduce(v, op, dst, st=60):
        for r in (8, 4, 2, 1):
            nop(1)
            A(f"v_{op}_f32_dpp v{v}, v{v}, v{v} row_ror:{r} row_mask:0xf bank_mask:0xf")
        nop(0)
        for i in range(4):
            A(f"v_readlane_b32 s{st+i}, v{v}, {16*i}")
        nop(0)
        A(f"v_mov_b32 v{dst}, s{st}")
        A(f"v_{op}_f32 v{dst}, s{st+1}, v{dst}")
        A(f"v_{op}_f32 v{dst}, s{st+2}, v{dst}")
        A(f"v_{op}_f32 v{dst}, s{st+3}, v{dst}")

    vSt = 255
    def stamp():
        if not stamps: return
        A("s_memrealtime s[90:91]")
        A("s_waitcnt lgkmcnt(0)")
        A(f"v_writelane_b32 v{vSt}, s90, m0")
        A("s_add_u32 m0, m0, 1")
    def stamp_flush():
        if not stamps: return
        A("s_mov_b64 exec, -1")
        A("s_getreg_b32 s90, hwreg(HW_REG_XCC_ID)")
        A(f"v_writelane_b32 v{vSt}, s90, 63")
        A("s_mov_b32 s84, s40"); A("s_mov_b32 s85, s41"); A("s_mov_b32 s86, 0x1000000"); A("s_mov_b32 s87, 0x20000")
        A("s_lshl_b32 s90, s2, 11")
        A("s_add_u32 s90, s90, 0x100000")
        A("v_lshlrev_b32 v254, 2, v0")
        A(f"buffer_store_dword v{vSt}, v254, s[84:87], s90 offen")
    def rbf(dst, src):
        A(f"v_cvt_pk_bf16_f32 v{dst}, v{src}, v{src}")
        A(f"v_and_b32 v{dst}, 0xffff0000, v{dst}")

    A("s_cmp_ge_u32 s2, 256")
    A(f"s_cbranch_scc1 {L('end')}")
    A("s_load_dwordx16 s[16:31], s[0:1], 0")
    A("s_load_dwordx8 s[32:39], s[0:1], 64")
    A("s_load_dwordx2 s[40:41], s[0:1], 96")
    if stamps:
        A("s_mov_b32 m0, 0"); A(f"v_mov_b32 v{vSt}, 0")
        stamp()
    A("v_lshrrev_b32 v2, 6, v0")
    A(f"v_and_b32 v{vLane}, 63, v0")
    A(f"v_readfirstlane_b32 s{sWave}, v2")
    A(f"s_lshr_b32 s{sB}, s2, 5")
    A(f"s_and_b32 s{sH}, s2, 31")
    A(f"v_and_b32 v8, 1, v{vLane}")
    A("v_lshlrev_b32 v8, 4, v8")
    A("v_mov_b32 v9, 0xffff")
    A("v_lshlrev_b32 v8, v8, v9")
    A(f"v_bfe_u32 v9, v{vLane}, 1, 3")
    for m in range(4):
        A(f"v_cmp_eq_u32 vcc, {m}, v9")
        nop(1)
        A(f"v_cndmask_b32 v{vMask[m]}, 0, v8, vcc")
    A(f"s_cmp_ge_u32 s{sWave}, 4")
    A(f"s_cbranch_scc1 {L('helper')}")

    vKoff, vVoff = 2, 3
    vM, vLs, vS = 8, 9, 10
    vT = [11, 12, 13, 14, 15]
    D = 16
    O = 20
    vP = [24, 25]
    vS2 = 26
    vLds = 28
    vMg, vRl = 29, 30
    BQ = 32
    RING = 64
    TMP = RING + RG * 16
    sK, sV = 44, 48
    sKpos, sVpos, sCnt = 52, 53, 54
    STEP = 16384

    A(f"v_and_b32 v{vKoff}, 3, v{vLane}")
    A(f"v_lshlrev_b32 v{vKoff}, 4, v{vKoff}")
    A(f"v_bfe_u32 v10, v{vLane}, 2, 2")
    A(f"v_lshl_add_u32 v{vKoff}, v10, 8, v{vKoff}")
    A(f"v_lshrrev_b32 v10, 4, v{vLane}")
    A(f"v_lshl_add_u32 v{vKoff}, v10, 6, v{vKoff}")
    A(f"v_lshlrev_b32 v{vVoff}, 4, v{vLane}")
    if kmap == "lin": A(f"v_lshlrev_b32 v{vKoff}, 4, v{vLane}")
    A("s_lshl_b32 s55, s2, 21")
    A(f"s_lshl_b32 s{sKpos}, s{sWave}, 12")
    A(f"s_mov_b32 s{sVpos}, s{sKpos}")
    A("s_waitcnt lgkmcnt(0)")
    A(f"s_add_u32 s{sK}, s18, s55"); A(f"s_addc_u32 s{sK+1}, s19, 0")
    A(f"s_mov_b32 s{sK+2}, 0x200000"); A(f"s_mov_b32 s{sK+3}, 0x20000")
    A(f"s_add_u32 s{sV}, s20, s55"); A(f"s_addc_u32 s{sV+1}, s21, 0")
    A(f"s_mov_b32 s{sV+2}, 0x200000"); A(f"s_mov_b32 s{sV+3}, 0x20000")

    def issue(l):
        kind = "k" if l < 512 else "v"
        srd, pos, vo = (sK, sKpos, vKoff) if kind == "k" else (sV, sVpos, vVoff)
        t = l % 4
        r = RING + (l % R) * 4
        A(f"buffer_load_dwordx4 v[{r}:{r+3}], v{vo}, s[{srd}:{srd+3}], s{pos} offen offset:{t*1024} {pol}")
        if t == 3: A(f"s_add_u32 s{pos}, s{pos}, {STEP}")

    if sprio: A(f"s_setprio {sprio}")
    for l in range(R):
        if l >= PDL:
            A(f"s_waitcnt vmcnt({PDL-1})")
        issue(l)
    A(f"v_mov_b32 v{vM}, 0xff7fffff")
    A(f"v_mov_b32 v{vLs}, 0")
    A(f"v_mov_b32 v{vS}, 0")
    A(f"s_lshl_b32 s55, s{sWave}, 13")
    A(f"s_add_u32 s55, s55, {L_SC}")
    A(f"v_lshl_add_u32 v{vLds}, v{vLane}, 2, s55")
    for r in range(4): A(f"v_mov_b32 v{O+r}, 0")
    A(f"v_lshrrev_b32 v{vT[0]}, 2, v{vLane}")
    A(f"v_lshlrev_b32 v{vT[0]}, 5, v{vT[0]}")
    A(f"v_and_b32 v{vT[1]}, 3, v{vLane}")
    stamp()
    A("s_barrier")
    stamp()
    for w in range(4):
        for hlf in range(2):
            r = TMP + w * 8 + hlf * 4
            A(f"ds_read_b128 v[{r}:{r+3}], v{vT[0]} offset:{L_QP + w*512 + hlf*16}")
    A("s_waitcnt lgkmcnt(0)")
    for e in range(8):
        A(f"v_add_f32 v{TMP+e}, v{TMP+e}, v{TMP+8+e}")
        A(f"v_add_f32 v{TMP+16+e}, v{TMP+16+e}, v{TMP+24+e}")
    for e in range(8):
        A(f"v_add_f32 v{TMP+e}, v{TMP+e}, v{TMP+16+e}")
    for m in range(4):
        A(f"v_cvt_pk_bf16_f32 v{TMP+8+m}, v{TMP+2*m}, v{TMP+2*m+1}")
    for t in range(4):
        A(f"v_cmp_eq_u32 vcc, {t}, v{vT[1]}")
        nop(1)
        for m in range(4):
            A(f"v_cndmask_b32 v{BQ+4*t+m}, 0, v{TMP+8+m}, vcc")
    nop(1)

    st = {"last": R - 1}
    def consume(l, mfma):
        if GR == 4:
            assert DL % 4 == 0 and DL < R
            if l % 4 == 0:
                A(f"s_waitcnt vmcnt({st['last'] - l - 3})")
                for want in range(l + DL, l + DL + 4):
                    if want > st["last"] and want < 1024:
                        assert want == st["last"] + 1
                        issue(want)
                        st["last"] = want
            A(mfma)
            return
        want = l + DL
        iss = want > st["last"] and want < 1024
        if iss: assert want == st["last"] + 1
        A(f"s_waitcnt vmcnt({st['last'] - l})")
        pre = iss and DL < R
        if pre: issue(want)
        A(mfma)
        if iss and not pre: issue(want)
        if iss: st["last"] = want
    def kstep(j):
        n = j % RG
        u = j % 4
        for t in range(4):
            l = 4 * j + t
            r = RING + (l % R) * 4
            c = "0" if t == 0 else f"v[{D}:{D+3}]"
            consume(l, f"v_mfma_f32_16x16x32_bf16 v[{D}:{D+3}], v[{r}:{r+3}], v[{BQ+4*t}:{BQ+4*t+3}], {c}")
        nop(7)
        a, b, c = u ^ 1, u ^ 2, u ^ 3
        A(f"v_add_f32_dpp v{vT[0]}, v{D+b}, v{D+u} row_ror:8 row_mask:0xf bank_mask:0xf")
        A(f"v_add_f32_dpp v{vT[1]}, v{D+c}, v{D+a} row_ror:8 row_mask:0xf bank_mask:0xf")
        nop(1)
        A(f"v_add_f32_dpp v{vS}, v{vT[1]}, v{vT[0]} row_ror:{4 if u & 1 else 12} row_mask:0xf bank_mask:{hex(1 << u)}")
        if u == 3:
            rbf(vT[2], vS)
            A(f"v_mul_f32 v{vT[2]}, {SCALE}, v{vT[2]}")
            rbf(vT[2], vT[2])
            A(f"ds_write_b32 v{vLds}, v{vT[2]} offset:{(n//4)*256}")
            A(f"v_max_f32 v{vT[3]}, v{vM}, v{vT[2]}")
            A(f"v_sub_f32 v{vT[0]}, v{vM}, v{vT[3]}")
            A(f"v_sub_f32 v{vT[1]}, v{vT[2]}, v{vT[3]}")
            A(f"v_mul_f32 v{vT[0]}, {LOG2E}, v{vT[0]}")
            A(f"v_mul_f32 v{vT[1]}, {LOG2E}, v{vT[1]}")
            A(f"v_exp_f32 v{vT[0]}, v{vT[0]}")
            A(f"v_exp_f32 v{vT[1]}, v{vT[1]}")
            A(f"v_mov_b32 v{vM}, v{vT[3]}")
            A(f"v_fma_f32 v{vLs}, v{vLs}, v{vT[0]}, v{vT[1]}")

    NIT = 128 // RG
    assert RG % 4 == 0 and 128 % RG == 0 and NIT >= 3
    for j in range(RG): kstep(j)
    A(f"v_add_u32 v{vLds}, {RG*64}, v{vLds}")
    stamp()
    assert st["last"] == R - 1 + DL
    A(f"s_mov_b32 s{sCnt}, {NIT-2}")
    LBL(L("kloop"))
    for j in range(RG, 2 * RG): kstep(j)
    A(f"v_add_u32 v{vLds}, {RG*64}, v{vLds}")
    stamp()
    A(f"s_sub_u32 s{sCnt}, s{sCnt}, 1")
    A(f"s_cmp_lg_u32 s{sCnt}, 0")
    A(f"s_cbranch_scc1 {L('kloop')}")
    st["last"] += R * (NIT - 3)
    for j in range(128 - RG, 128): kstep(j)
    assert st["last"] == 511 + DL
    stamp()
    for l in range(st["last"] + 1, 512 + MIDL):
        issue(l)
        st["last"] = l
    A(f"v_subrev_u32 v{vLds}, {8192 - RG*64}, v{vLds}")
    A(f"v_mov_b32 v{vT[0]}, v{vM}")
    wave_reduce(vT[0], "max", vT[2])
    A(f"v_sub_f32 v{vT[0]}, v{vM}, v{vT[2]}")
    A(f"v_mul_f32 v{vT[0]}, {LOG2E}, v{vT[0]}")
    A(f"v_exp_f32 v{vT[0]}, v{vT[0]}")
    nop(0)
    A(f"v_mul_f32 v{vT[0]}, v{vLs}, v{vT[0]}")
    wave_reduce(vT[0], "add", vT[3])
    A(f"v_mov_b32 v{D}, v{vT[2]}")
    A(f"v_mov_b32 v{D+1}, v{vT[3]}")
    A(f"s_lshl_b32 s55, s{sWave}, 3")
    A(f"v_mov_b32 v{vT[0]}, s55")
    A(f"v_mov_b32 v{vT[1]}, 0")
    A("s_mov_b64 exec, 1")
    A(f"ds_write_b64 v{vT[0]}, v[{D}:{D+1}] offset:{L_ST}")
    A("s_mov_b64 exec, -1")
    A(f"ds_read2st64_b32 v[{vS2}:{vS2+1}], v{vLds} offset0:0 offset1:1")
    A("s_waitcnt lgkmcnt(0)")
    stamp()
    A("s_barrier")
    stamp()
    A(f"ds_read_b128 v[{TMP}:{TMP+3}], v{vT[1]} offset:{L_ST}")
    A(f"ds_read_b128 v[{TMP+4}:{TMP+7}], v{vT[1]} offset:{L_ST+16}")
    A("s_waitcnt lgkmcnt(0)")
    A(f"v_max3_f32 v{vMg}, v{TMP}, v{TMP+2}, v{TMP+4}")
    A(f"v_max_f32 v{vMg}, v{vMg}, v{TMP+6}")
    for w in range(4):
        A(f"v_sub_f32 v{TMP+2*w}, v{TMP+2*w}, v{vMg}")
        A(f"v_mul_f32 v{TMP+2*w}, {LOG2E}, v{TMP+2*w}")
        A(f"v_exp_f32 v{TMP+2*w}, v{TMP+2*w}")
    nop(0)
    A(f"v_mul_f32 v{vT[0]}, v{TMP}, v{TMP+1}")
    for w in range(1, 4):
        A(f"v_fma_f32 v{vT[0]}, v{TMP+2*w}, v{TMP+2*w+1}, v{vT[0]}")
    A(f"v_rcp_f32 v{vRl}, v{vT[0]}")
    nop(0)
    A(f"v_fma_f32 v{vT[1]}, -v{vT[0]}, v{vRl}, 1.0")
    A(f"v_fma_f32 v{vRl}, v{vT[1]}, v{vRl}, v{vRl}")

    assert RG == 8, "V loop is written for 2 P registers per iteration"
    def vhead():
        stamp()
        A("s_waitcnt lgkmcnt(0)")
        for i in range(2): A(f"v_sub_f32 v{vP[i]}, v{vS2+i}, v{vMg}")
        for i in range(2): A(f"v_mul_f32 v{vP[i]}, {LOG2E}, v{vP[i]}")
        for i in range(2): A(f"v_exp_f32 v{vP[i]}, v{vP[i]}")
        A(f"v_add_u32 v{vLds}, 512, v{vLds}")
        for i in range(2): A(f"v_mul_f32 v{vP[i]}, v{vP[i]}, v{vRl}")
        for i in range(2): A(f"v_cvt_pk_bf16_f32 v{vP[i]}, v{vP[i]}, v{vP[i]}")
        A(f"ds_read2st64_b32 v[{vS2}:{vS2+1}], v{vLds} offset0:0 offset1:1")
        nop(0)
    def vstep(j):
        n = j % RG
        u = j % 4
        p = vP[n // 4]
        for t in range(4):
            for m in range(4):
                A(f"v_and_b32_dpp v{BQ+4*t+m}, v{p}, v{vMask[m]} row_newbcast:{u*4+t} row_mask:0xf bank_mask:0xf")
        for t in range(4):
            l = 4 * j + t
            r = RING + (l % R) * 4
            consume(l, f"v_mfma_f32_16x16x32_bf16 v[{O}:{O+3}], v[{BQ+4*t}:{BQ+4*t+3}], v[{r}:{r+3}], v[{O}:{O+3}]")
    vhead()
    for j in range(128, 128 + RG): vstep(j)
    assert st["last"] == 512 + R - 1 + DL
    A(f"s_mov_b32 s{sCnt}, {NIT-2}")
    LBL(L("vloop"))
    vhead()
    for j in range(128 + RG, 128 + 2 * RG): vstep(j)
    A(f"s_sub_u32 s{sCnt}, s{sCnt}, 1")
    A(f"s_cmp_lg_u32 s{sCnt}, 0")
    A(f"s_cbranch_scc1 {L('vloop')}")
    st["last"] += R * (NIT - 3)
    vhead()
    for j in range(256 - RG, 256): vstep(j)
    assert st["last"] == 1023
    A(f"v_and_b32 v{vT[0]}, 15, v{vLane}")
    A(f"v_lshlrev_b32 v{vT[0]}, 5, v{vT[0]}")
    A(f"v_lshrrev_b32 v{vT[1]}, 4, v{vLane}")
    A(f"v_lshl_add_u32 v{vT[0]}, v{vT[1]}, 4, v{vT[0]}")
    A(f"s_lshl_b32 s55, s{sWave}, 9")
    A(f"v_add_u32 v{vT[0]}, s55, v{vT[0]}")
    A("s_mov_b32 exec_hi, 0")
    nop(2)
    A(f"ds_write_b128 v{vT[0]}, v[{O}:{O+3}] offset:{L_OP}")
    A("s_waitcnt lgkmcnt(0)")
    stamp()
    A("s_barrier")
    stamp()
    stamp_flush()
    A("s_endpgm")

    LBL(L("helper"))
    sHW = 44
    sX, sW, sWS, sDbg, sOut = 48, 52, 64, 68, 72
    sOff = 45
    vG, vC = 2, 3
    vX4 = 8
    vXs = 12
    vXf = 16
    vMu, vMb, vDen, vRd = 24, 25, 26, 27
    vA = 28
    vAcc = 36
    hT = [40, 41, 42, 43, 44, 45, 46, 47]
    vWoff = 48
    vPO = 49
    vH = 52
    vGres = 56
    vGc0, vGc1 = 57, 58
    vFin = 60
    vXo = 50
    W = 64
    PW = 192
    A("s_setprio 3")
    A(f"s_sub_u32 s{sHW}, s{sWave}, 4")
    A(f"v_lshrrev_b32 v{vG}, 4, v{vLane}")
    A(f"v_and_b32 v{vC}, 15, v{vLane}")
    A(f"v_lshlrev_b32 v{hT[0]}, 4, v{vLane}")
    A(f"s_lshl_b32 s56, s{sB}, 2")
    if not rot: A("s_mov_b32 s56, 0")
    A(f"v_add_u32 v{hT[1]}, s56, v{vC}")
    A(f"v_add_u32 v{hT[2]}, 16, v{hT[1]}")
    A(f"v_and_b32 v{hT[1]}, 31, v{hT[1]}")
    A(f"v_and_b32 v{hT[2]}, 31, v{hT[2]}")
    A(f"v_lshlrev_b32 v{hT[1]}, 3, v{hT[1]}")
    A(f"v_lshlrev_b32 v{hT[2]}, 3, v{hT[2]}")
    A(f"v_lshl_add_u32 v{hT[1]}, v{vG}, 1, v{hT[1]}")
    A(f"v_lshl_add_u32 v{hT[2]}, v{vG}, 1, v{hT[2]}")
    A(f"s_lshl_b32 s{sOff}, s56, 15")
    A(f"v_lshlrev_b32 v{vWoff}, 4, v{vC}")
    A(f"v_lshl_add_u32 v{vWoff}, v{vG}, 13, v{vWoff}")
    A(f"v_lshlrev_b32 v{vPO}, 5, v{vC}")
    A(f"v_lshl_add_u32 v{vPO}, v{vG}, 4, v{vPO}")
    A(f"s_lshl_b32 s46, s{sB}, 10")
    A(f"s_lshl_b32 s47, s{sHW}, 8")
    A(f"s_lshl_b32 s57, s{sHW}, 20")
    A(f"s_lshl_b32 s56, s{sH}, 8")
    A(f"s_add_u32 s57, s57, s56")
    A("s_waitcnt lgkmcnt(0)")
    A(f"s_add_u32 s{sX}, s16, s46"); A(f"s_addc_u32 s{sX+1}, s17, 0")
    A(f"s_mov_b32 s{sX+2}, 1024"); A(f"s_mov_b32 s{sX+3}, 0x20000")
    A(f"s_add_u32 s{sW}, s22, s57"); A(f"s_addc_u32 s{sW+1}, s23, 0")
    A(f"s_sub_u32 s{sW+2}, 0x100000, s56"); A(f"s_mov_b32 s{sW+3}, 0x20000")
    if nowq: A(f"s_mov_b32 s{sW+2}, 0")
    A(f"buffer_load_dwordx4 v[{vX4}:{vX4+3}], v{hT[0]}, s[{sX}:{sX+3}], 0 offen")
    A(f"buffer_load_ushort v{vXs}, v{hT[1]}, s[{sX}:{sX+3}], s47 offen")
    A(f"buffer_load_ushort v{vXs+1}, v{hT[2]}, s[{sX}:{sX+3}], s47 offen")
    hs = {"last": -1}
    def wq_issue(i):
        assert i == hs["last"] + 1
        A(f"buffer_load_dwordx4 v[{W+4*i}:{W+4*i+3}], v{vWoff}, s[{sW}:{sW+3}], s{sOff} offen {wpol}")
        if i < 31:
            A(f"s_add_u32 s{sOff}, s{sOff}, 32768")
            A(f"s_and_b32 s{sOff}, s{sOff}, 0xfffff")
        hs["last"] = i
    for i in range(HW0): wq_issue(i)
    A(f"s_lshl_b32 s56, s{sH}, 5")
    A(f"s_lshl_b32 s57, s{sHW}, 3")
    A("s_add_u32 s56, s56, s57")
    A(f"s_add_u32 s58, s{sX}, s56"); A(f"s_addc_u32 s59, s{sX+1}, 0")
    A("s_load_dwordx2 s[76:77], s[58:59], 0")
    A("s_load_dword s78, s[34:35], 0")

    def unpack8(src, dst):
        for i in range(4):
            A(f"v_lshlrev_b32 v{dst+2*i}, 16, v{src+i}")
            A(f"v_and_b32 v{dst+2*i+1}, 0xffff0000, v{src+i}")
    def ln_stats(xf, mb, den, rd):
        t0, t1, t2 = hT[0], hT[1], hT[2]
        A(f"v_add_f32 v{t0}, v{xf}, v{xf+1}")
        A(f"v_add_f32 v{t1}, v{xf+2}, v{xf+3}")
        A(f"v_add_f32 v{t2}, v{xf+4}, v{xf+5}")
        A(f"v_add_f32 v{t0}, v{t0}, v{t1}")
        A(f"v_add_f32 v{t1}, v{xf+6}, v{xf+7}")
        A(f"v_add_f32 v{t1}, v{t1}, v{t2}")
        A(f"v_add_f32 v{t0}, v{t0}, v{t1}")
        wave_reduce(t0, "add", vMu)
        A(f"v_mul_f32 v{vMu}, {f32(1/512)}, v{vMu}")
        A(f"v_sub_f32 v{t1}, v{xf}, v{vMu}")
        A(f"v_mul_f32 v{t0}, v{t1}, v{t1}")
        for i in range(1, 8):
            A(f"v_sub_f32 v{t1}, v{xf+i}, v{vMu}")
            A(f"v_fma_f32 v{t0}, v{t1}, v{t1}, v{t0}")
        wave_reduce(t0, "add", den)
        A(f"v_mul_f32 v{den}, {f32(1/512)}, v{den}")
        rbf(mb, vMu)
        rbf(den, den)
        A(f"v_add_f32 v{den}, {f32(1e-5)}, v{den}")
        rbf(den, den)
        A(f"v_sqrt_f32 v{den}, v{den}")
        nop(0)
        rbf(den, den)
        A(f"v_rcp_f32 v{rd}, v{den}")
        nop(0)
    def ln_apply(v, mb, den, rd, tmp):
        A(f"v_sub_f32 v{v}, v{v}, v{mb}")
        rbf(v, v)
        A(f"v_mul_f32 v{tmp}, v{v}, v{rd}")
        A(f"v_fma_f32 v{v}, -v{tmp}, v{den}, v{v}")
        A(f"v_fma_f32 v{v}, v{v}, v{rd}, v{tmp}")

    stamp()
    A(f"s_waitcnt vmcnt({HW0+2})")
    stamp()
    unpack8(vX4, vXf)
    ln_stats(vXf, vMb, vDen, vRd)
    A(f"s_waitcnt vmcnt({HW0})")
    for k in range(2):
        A(f"v_lshlrev_b32 v{vXs+k}, 16, v{vXs+k}")
        ln_apply(vXs + k, vMb, vDen, vRd, hT[0])
        A(f"v_cvt_pk_bf16_f32 v{vXs+k}, v{vXs+k}, v{vXs+k}")
    nop(1)
    def diag_matvec(src, waits):
        def mkA(i):
            for m in range(4):
                A(f"v_and_b32_dpp v{vA+4*(i&1)+m}, v{src+(i>>4)}, v{vMask[m]} row_newbcast:{i&15} row_mask:0xf bank_mask:0xf")
        mkA(0)
        for i in range(32):
            if i < 31: mkA(i + 1)
            else: nop(1)
            if waits:
                A(f"s_waitcnt vmcnt({hs['last']-i})")
                if i + HT > hs["last"] and i + HT < 32: wq_issue(i + HT)
            c = "0" if i == 0 else f"v[{vAcc}:{vAcc+3}]"
            a = vA + 4 * (i & 1)
            A(f"v_mfma_f32_16x16x32_bf16 v[{vAcc}:{vAcc+3}], v[{a}:{a+3}], v[{W+4*i}:{W+4*i+3}], {c}")
    stamp()
    diag_matvec(vXs, True)
    stamp()
    A(f"s_lshl_b32 s56, s{sHW}, 9")
    A(f"v_add_u32 v{hT[0]}, s56, v{vPO}")
    A("s_mov_b32 exec_hi, 0")
    nop(5)
    A(f"ds_write_b128 v{hT[0]}, v[{vAcc}:{vAcc+3}] offset:{L_QP}")
    A("s_mov_b32 exec_hi, -1")
    A("s_waitcnt lgkmcnt(0)")
    A("s_barrier")
    stamp()
    A(f"s_mov_b32 s{sWS}, s40"); A(f"s_mov_b32 s{sWS+1}, s41")
    A(f"s_mov_b32 s{sWS+2}, {WS_BYTES}"); A(f"s_mov_b32 s{sWS+3}, 0x20000")
    A(f"s_mov_b32 s{sDbg}, s38"); A(f"s_mov_b32 s{sDbg+1}, s39")
    A(f"s_mov_b32 s{sDbg+2}, 256"); A(f"s_mov_b32 s{sDbg+3}, 0x20000")
    A(f"s_mov_b32 s{sOut}, s36"); A(f"s_mov_b32 s{sOut+1}, s37")
    A(f"s_mov_b32 s{sOut+2}, 8192"); A(f"s_mov_b32 s{sOut+3}, 0x20000")
    A(f"s_lshl_b32 s79, s{sB}, 2")
    A(f"s_add_u32 s79, s79, s{sHW}")
    A("s_lshl_b32 s79, s79, 14")
    A(f"s_lshl_b32 s80, s{sH}, 9")
    A("s_add_u32 s80, s80, s79")
    for r in range(4): A(f"v_mov_b32 v{vAcc+r}, -1")
    A("s_mov_b32 exec_hi, 0")
    A(f"buffer_store_dwordx4 v[{vAcc}:{vAcc+3}], v{vPO}, s[{sWS}:{sWS+3}], s80 offen sc1")
    A("s_mov_b32 exec_hi, -1")
    A(f"v_lshlrev_b32 v{hT[7]}, 3, v{vLane}")
    for a_i, ptr in enumerate((28, 30, 32)):
        A(f"s_mov_b32 s{sW}, s{ptr}"); A(f"s_mov_b32 s{sW+1}, s{ptr+1}")
        A(f"s_mov_b32 s{sW+2}, 3584"); A(f"s_mov_b32 s{sW+3}, 0x20000")
        for i in range(7):
            r = PW + a_i * 14 + 2 * i
            A(f"buffer_load_dwordx2 v[{r}:{r+1}], v{hT[7]}, s[{sW}:{sW+3}], 0 offen offset:{i*512}")
    stamp()
    A("s_setprio 0")
    for i in range(8):
        ln_apply(vXf + i, vMb, vDen, vRd, hT[0])
        rbf(vXf + i, vXf + i)
    A("s_lshl_b32 s56, s76, 16"); A(f"v_mov_b32 v{vH}, s56")
    A("s_and_b32 s56, s76, 0xffff0000"); A(f"v_mov_b32 v{vH+1}, s56")
    A("s_lshl_b32 s56, s77, 16"); A(f"v_mov_b32 v{vH+2}, s56")
    A("s_and_b32 s56, s77, 0xffff0000"); A(f"v_mov_b32 v{vH+3}, s56")
    A("s_lshl_b32 s78, s78, 16")
    for j in range(4):
        ln_apply(vH + j, vMb, vDen, vRd, hT[0])
        rbf(vH + j, vH + j)
    ln_stats(vXf, vMb, vDen, vRd)
    for j in range(4):
        ln_apply(vH + j, vMb, vDen, vRd, hT[0])
        rbf(vH + j, vH + j)
    A(f"v_mov_b32 v{vGc0}, {f32(GC0)}")
    A(f"v_mov_b32 v{vGc1}, {f32(GC1)}")
    A(f"v_mov_b32 v{vGres}, 0")
    stamp()
    A("s_waitcnt vmcnt(0)")
    stamp()
    for a_i in range(3):
        for i in range(14):
            A(f"v_lshlrev_b32 v{W+a_i*28+2*i}, 16, v{PW+a_i*14+i}")
            A(f"v_and_b32 v{W+a_i*28+2*i+1}, 0xffff0000, v{PW+a_i*14+i}")
    A("s_mov_b32 s57, 0")
    LBL(L("gate"))
    stamp()
    u0, u1, t0, t1, pk, acc = hT[0], hT[1], hT[2], hT[3], hT[4], hT[5]
    A(f"v_mov_b32 v{acc}, 0")
    for i in range(14):
        w1, b1, w2 = W + 2 * i, W + 28 + 2 * i, W + 56 + 2 * i
        A(f"v_mul_f32 v{u0}, v{vH}, v{w1}")
        A(f"v_mul_f32 v{u1}, v{vH}, v{w1+1}")
        A(f"v_cvt_pk_bf16_f32 v{pk}, v{u0}, v{u1}")
        A(f"v_lshlrev_b32 v{u0}, 16, v{pk}")
        A(f"v_and_b32 v{u1}, 0xffff0000, v{pk}")
        A(f"v_add_f32 v{u0}, v{u0}, v{b1}")
        A(f"v_add_f32 v{u1}, v{u1}, v{b1+1}")
        A(f"v_cvt_pk_bf16_f32 v{pk}, v{u0}, v{u1}")
        A(f"v_lshlrev_b32 v{u0}, 16, v{pk}")
        A(f"v_and_b32 v{u1}, 0xffff0000, v{pk}")
        A(f"v_mul_f32 v{t0}, v{u0}, v{u0}")
        A(f"v_mul_f32 v{t1}, v{u1}, v{u1}")
        A(f"v_fma_f32 v{t0}, v{t0}, v{vGc1}, v{vGc0}")
        A(f"v_fma_f32 v{t1}, v{t1}, v{vGc1}, v{vGc0}")
        A(f"v_mul_f32 v{t0}, v{t0}, v{u0}")
        A(f"v_mul_f32 v{t1}, v{t1}, v{u1}")
        A(f"v_exp_f32 v{t0}, v{t0}")
        A(f"v_exp_f32 v{t1}, v{t1}")
        A(f"v_add_f32 v{t0}, 1.0, v{t0}")
        A(f"v_add_f32 v{t1}, 1.0, v{t1}")
        A(f"v_rcp_f32 v{t0}, v{t0}")
        A(f"v_rcp_f32 v{t1}, v{t1}")
        A(f"v_mul_f32 v{u0}, v{u0}, v{t0}")
        A(f"v_mul_f32 v{u1}, v{u1}, v{t1}")
        A(f"v_cvt_pk_bf16_f32 v{pk}, v{u0}, v{u1}")
        A(f"v_lshlrev_b32 v{u0}, 16, v{pk}")
        A(f"v_and_b32 v{u1}, 0xffff0000, v{pk}")
        A(f"v_fma_f32 v{acc}, v{u0}, v{w2}, v{acc}")
        A(f"v_fma_f32 v{acc}, v{u1}, v{w2+1}, v{acc}")
    wave_reduce(acc, "add", u0)
    rbf(u0, u0)
    A(f"v_add_f32 v{u0}, s78, v{u0}")
    rbf(u0, u0)
    A(f"v_mul_f32 v{t0}, {f32(-math.log2(math.e))}, v{u0}")
    A(f"v_exp_f32 v{t0}, v{t0}")
    nop(0)
    A(f"v_add_f32 v{t0}, 1.0, v{t0}")
    A(f"v_rcp_f32 v{t1}, v{t0}")
    nop(0)
    A(f"v_mul_f32 v{u1}, v{u0}, v{t1}")
    rbf(u1, u1)
    A(f"v_cmp_eq_u32 vcc, s57, v{vLane}")
    nop(1)
    A(f"v_cndmask_b32 v{vGres}, v{vGres}, v{u1}, vcc")
    A(f"v_mov_b32 v{vH}, v{vH+1}")
    A(f"v_mov_b32 v{vH+1}, v{vH+2}")
    A(f"v_mov_b32 v{vH+2}, v{vH+3}")
    A("s_add_u32 s57, s57, 1")
    A("s_cmp_lt_u32 s57, 4")
    A(f"s_cbranch_scc1 {L('gate')}")
    A("s_setprio 3")
    A(f"s_lshl_b32 s81, s{sB}, 11")
    A(f"s_add_u32 s81, s81, {WS_GATE}")
    A(f"s_lshl_b32 s56, s{sH}, 6")
    A(f"s_lshl_b32 s57, s{sHW}, 4")
    A("s_add_u32 s56, s56, s57")
    A("s_add_u32 s56, s56, s81")
    A(f"v_lshlrev_b32 v{hT[0]}, 2, v{vLane}")
    A("s_mov_b64 exec, 15")
    A(f"buffer_store_dword v{vGres}, v{hT[0]}, s[{sWS}:{sWS+3}], s56 offen sc1")
    A("s_mov_b64 exec, -1")
    stamp()
    A(f"s_mov_b32 s{sW}, s24"); A(f"s_mov_b32 s{sW+1}, s25")
    A(f"s_mov_b32 s{sW+2}, 0x400000"); A(f"s_mov_b32 s{sW+3}, 0x20000")
    A(f"v_lshlrev_b32 v{vWoff}, 4, v{vC}")
    A(f"v_lshl_add_u32 v{vWoff}, v{vG}, 10, v{vWoff}")
    A(f"s_lshl_b32 s{sOff}, s{sH}, 17")
    A(f"s_lshl_b32 s56, s{sHW}, 8")
    A(f"s_add_u32 s{sOff}, s{sOff}, s56")
    for i in range(0 if nowo else 32):
        if i >= WOT: A(f"s_waitcnt vmcnt({WOT-1})")
        A(f"buffer_load_dwordx4 v[{W+4*i}:{W+4*i+3}], v{vWoff}, s[{sW}:{sW+3}], s{sOff} offen {wpol}")
        if i < 31: A(f"s_add_u32 s{sOff}, s{sOff}, 4096")
    A("s_waitcnt vmcnt(0)")
    stamp()
    A("s_barrier")
    stamp()
    A(f"s_lshl_b32 s82, s{sB}, 5")
    A(f"v_mov_b32 v{hT[0]}, 0")
    A(f"v_mov_b32 v{hT[1]}, 1")
    A(f"s_cmp_lg_u32 s{sHW}, 0")
    A(f"s_cbranch_scc1 {L('noarrive')}")
    A("s_mov_b64 exec, 1")
    A(f"buffer_atomic_add v{hT[1]}, v{hT[0]}, s[{sDbg}:{sDbg+3}], s82 offen")
    A("s_mov_b64 exec, -1")
    LBL(L("noarrive"))
    A(f"s_lshl_b32 s83, s{sB}, 2")
    A(f"s_add_u32 s83, s83, s{sHW}")
    A(f"s_cmp_lg_u32 s83, s{sH}")
    A(f"s_cbranch_scc1 {L('notcons1')}")
    A("s_mov_b32 s57, 0")
    LBL(L("cpoll"))
    A(f"buffer_load_dword v{hT[2]}, v{hT[0]}, s[{sDbg}:{sDbg+3}], s82 offen sc1")
    A("s_waitcnt vmcnt(0)")
    A(f"v_readfirstlane_b32 s56, v{hT[2]}")
    A("s_add_u32 s57, s57, 1")
    A("s_cmp_ge_u32 s57, 0x400000")
    A(f"s_cbranch_scc1 {L('cpoll_done')}")
    A("s_cmp_ge_u32 s56, 32")
    A(f"s_cbranch_scc1 {L('cpoll_done')}")
    A("s_sleep 32")
    A(f"s_branch {L('cpoll')}")
    LBL(L("cpoll_done"))
    A(f"v_and_b32 v{hT[2]}, 31, v{vLane}")
    A(f"v_lshlrev_b32 v{hT[3]}, 3, v{hT[2]}")
    A(f"v_lshlrev_b32 v{hT[2]}, 4, v{hT[2]}")
    A(f"s_lshl_b32 s56, s{sHW}, 9")
    A("s_add_u32 s56, s56, s81")
    A(f"buffer_load_dwordx4 v[{vFin}:{vFin+3}], v{hT[2]}, s[{sWS}:{sWS+3}], s56 offen sc1")
    A(f"buffer_load_dwordx2 v[{vXo}:{vXo+1}], v{hT[3]}, s[{sX}:{sX+3}], s47 offen")
    A("s_waitcnt vmcnt(0)")
    LBL(L("notcons1"))
    A(f"v_lshlrev_b32 v{hT[0]}, 4, v{vC}")
    A(f"v_lshl_add_u32 v{hT[0]}, v{vG}, 2, v{hT[0]}")
    A("s_setprio 3")
    stamp()
    A("s_barrier")
    stamp()
    for w in range(4):
        A(f"ds_read2st64_b32 v[{vXf+2*w}:{vXf+2*w+1}], v{hT[0]} offset0:{L_OP//256+2*w} offset1:{L_OP//256+2*w+1}")
    A("s_waitcnt lgkmcnt(0)")
    for k in range(2):
        A(f"v_add_f32 v{vXf+k}, v{vXf+k}, v{vXf+2+k}")
        A(f"v_add_f32 v{vXf+4+k}, v{vXf+4+k}, v{vXf+6+k}")
    for k in range(2):
        A(f"v_add_f32 v{vXf+k}, v{vXf+k}, v{vXf+4+k}")
    for k in range(2):
        A(f"v_cvt_pk_bf16_f32 v{vXs+k}, v{vXf+k}, v{vXf+k}")
    nop(1)
    diag_matvec(vXs, False)
    A("s_mov_b32 exec_hi, 0")
    nop(6)
    for r in range(4): A(f"v_min_u32 v{vAcc+r}, -2, v{vAcc+r}")
    A(f"buffer_store_dwordx4 v[{vAcc}:{vAcc+3}], v{vPO}, s[{sWS}:{sWS+3}], s80 offen sc1")
    A("s_mov_b32 exec_hi, -1")
    stamp()
    A(f"s_cmp_lg_u32 s83, s{sH}")
    A(f"s_cbranch_scc1 {L('hend')}")
    A(f"v_lshlrev_b32 v{hT[0]}, 4, v{vLane}")
    A("s_mov_b32 s57, 0")
    LBL(L("gpoll"))
    A("s_mov_b32 s56, s79")
    for i in range(16):
        A(f"buffer_load_dwordx4 v[{W+4*i}:{W+4*i+3}], v{hT[0]}, s[{sWS}:{sWS+3}], s56 offen offset:{(i%4)*1024} sc1")
        if i % 4 == 3 and i < 15: A("s_add_u32 s56, s56, 4096")
    for i in range(1, 16):
        A(f"s_waitcnt vmcnt({15-i})")
        for r in range(4):
            src = f"v{W+r}" if i == 1 else f"v{vAcc+r}"
            A(f"v_add_f32 v{vAcc+r}, {src}, v{W+4*i+r}")
    A(f"v_add_f32 v{hT[1]}, v{vAcc}, v{vAcc+1}")
    A(f"v_add_f32 v{hT[2]}, v{vAcc+2}, v{vAcc+3}")
    A(f"v_cmp_u_f32 vcc, v{hT[1]}, v{hT[2]}")
    A("s_add_u32 s57, s57, 1")
    nop(3)
    A(f"s_cbranch_vccz {L('gdone')}")
    A(f"v_max3_u32 v{hT[1]}, v{W}, v{W+1}, v{W+2}")
    A(f"v_max_u32 v{hT[1]}, v{hT[1]}, v{W+3}")
    for i in range(2, 32):
        A(f"v_max3_u32 v{hT[1]}, v{hT[1]}, v{W+2*i}, v{W+2*i+1}")
    A(f"v_cmp_eq_u32 vcc, -1, v{hT[1]}")
    A("s_cmp_ge_u32 s57, 0x400000")
    A(f"s_cbranch_scc1 {L('gdone')}")
    nop(3)
    A(f"s_cbranch_vccnz {L('gpoll')}")
    LBL(L("gdone"))
    for r in range(4): A(f"v_mov_b32 v{hT[r]}, v{vAcc+r}")
    nop(1)
    for r in range(4): A(f"v_permlane32_swap_b32 v{hT[r]}, v{vAcc+r}")
    for r in range(4): A(f"v_add_f32 v{vAcc+r}, v{vAcc+r}, v{hT[r]}")
    for r in range(4): rbf(vAcc + r, vAcc + r)
    for r in range(4): A(f"v_mul_f32 v{vAcc+r}, v{vAcc+r}, v{vFin+r}")
    for r in range(4): rbf(vAcc + r, vAcc + r)
    A(f"v_lshlrev_b32 v{hT[0]}, 16, v{vXo}")
    A(f"v_and_b32 v{hT[1]}, 0xffff0000, v{vXo}")
    A(f"v_lshlrev_b32 v{hT[2]}, 16, v{vXo+1}")
    A(f"v_and_b32 v{hT[3]}, 0xffff0000, v{vXo+1}")
    for r in range(4): A(f"v_add_f32 v{vAcc+r}, v{vAcc+r}, v{hT[r]}")
    A(f"v_cvt_pk_bf16_f32 v{hT[4]}, v{vAcc}, v{vAcc+1}")
    A(f"v_cvt_pk_bf16_f32 v{hT[5]}, v{vAcc+2}, v{vAcc+3}")
    A(f"v_lshlrev_b32 v{hT[0]}, 3, v{vLane}")
    A("s_add_u32 s56, s46, s47")
    A("s_mov_b32 exec_hi, 0")
    A(f"buffer_store_dwordx2 v[{hT[4]}:{hT[5]}], v{hT[0]}, s[{sOut}:{sOut+3}], s56 offen")
    if stamps:
        A("s_waitcnt vmcnt(0)")
        A("s_mov_b64 exec, -1")
        stamp()
        A(f"v_writelane_b32 v{vSt}, s57, 62")
    LBL(L("hend"))
    stamp_flush()
    LBL(L("end"))
    A("s_endpgm")
    return "\n".join(out)

HEADER = open("cdna_kernels/" + NAME + ".s.ref").read().split("; Override launch geometry")[0]

def full(path, **kw):
    kname = NAME + "_kernel"
    body = gen(**kw)
    s = HEADER
    s += f"; @launch grid=(256,1,1) block=(512,1,1) lds={LDS_BYTES}\n"
    s += '.amdgcn_target "amdgcn-amd-amdhsa--gfx950"\n.text\n'
    s += f".globl {kname}\n.p2align 8\n.type {kname},@function\n{kname}:\n"
    s += body + "\n"
    s += f""".section .rodata,"a"
.p2align 6
.amdhsa_kernel {kname}
  .amdhsa_next_free_vgpr 256
  .amdhsa_next_free_sgpr 96
  .amdhsa_accum_offset 256
  .amdhsa_group_segment_fixed_size 0
  .amdhsa_kernarg_size 104
  .amdhsa_user_sgpr_count 2
  .amdhsa_user_sgpr_kernarg_segment_ptr 1
  .amdhsa_system_sgpr_workgroup_id_x 1
  .amdhsa_float_denorm_mode_32 3
.end_amdhsa_kernel
"""
    open(path, "w").write(s)

if __name__ == "__main__":
    kw = {}
    path = "cdna_kernels/" + NAME + ".s"
    for a in sys.argv[1:]:
        k, v = a.split("=")
        if k == "out": path = v
        else: kw[k] = int(v) if v.lstrip("-").isdigit() else v
    full(path, **kw)
```

```python
import sys, struct
NAME = "recurrent_scan__mha_block_cached__mixer_token_mlp__decode"

def f32(x): return "0x%08x" % struct.unpack("<I", struct.pack("<f", x))[0]

import math
SCALE = f32(128 ** -0.5)
LOG2E = f32(math.log2(math.e))
GC0 = -2.0 * math.sqrt(2.0 / math.pi) * math.log2(math.e)
GC1 = GC0 * 0.044715

L_QP = 0
L_ST = 2048
L_OP = 4096
L_SC = 8192
L_G = 6144
L_STG = L_SC + 32768 + 512
WS_PART = 0
WS_GATE = 512 * 1024
WS_BYTES = WS_GATE + 16384
def lds_bytes(E=16, **kw): return L_STG + 4 * E * 1024

def gen(W="6", RD=8, PDL=8, E=16, HT=8, HW0=12, WOT=4, WOP=0, MIDA=1, MIDB=1, MIDC=2, kname=NAME + "_kernel", stamps=False, pol="nt", rot=1, sprio=1, wpol="nt", nowo=0, perm=0, pst=0, nowq=0, WE=0, NE=1):
    RG = 8
    pat = [int(c, 16) for c in str(W)]
    assert RD > max(pat) or RD == max(pat) == min(pat)
    assert E in (0, 16)
    R = 4 * RG
    out = []
    def A(s): out.append("    " + s)
    def LBL(s): out.append(s + ":")
    L = lambda s: f"L_{s}"

    vLane = 1
    vMask = [4, 5, 6, 7]
    sWave = 3
    sB, sH = 42, 43
    def nop(n): A(f"s_nop {n}")

    def wave_reduce(v, op, dst, st=60):
        for r in (8, 4, 2, 1):
            nop(1)
            A(f"v_{op}_f32_dpp v{v}, v{v}, v{v} row_ror:{r} row_mask:0xf bank_mask:0xf")
        nop(0)
        for i in range(4):
            A(f"v_readlane_b32 s{st+i}, v{v}, {16*i}")
        nop(0)
        A(f"v_mov_b32 v{dst}, s{st}")
        A(f"v_{op}_f32 v{dst}, s{st+1}, v{dst}")
        A(f"v_{op}_f32 v{dst}, s{st+2}, v{dst}")
        A(f"v_{op}_f32 v{dst}, s{st+3}, v{dst}")

    vSt = 255
    def stamp():
        if not stamps: return
        A("s_memrealtime s[90:91]")
        A("s_waitcnt lgkmcnt(0)")
        A("s_mov_b32 m0, s92")
        A(f"v_writelane_b32 v{vSt}, s90, m0")
        A("s_add_u32 s92, s92, 1")
    def stamp_flush():
        if not stamps: return
        A("s_mov_b64 exec, -1")
        A("s_getreg_b32 s90, hwreg(HW_REG_XCC_ID)")
        A(f"v_writelane_b32 v{vSt}, s90, 63")
        A("s_mov_b32 s84, s40"); A("s_mov_b32 s85, s41"); A("s_mov_b32 s86, 0x1000000"); A("s_mov_b32 s87, 0x20000")
        A("s_lshl_b32 s90, s2, 11")
        A("s_add_u32 s90, s90, 0x100000")
        A("v_lshlrev_b32 v254, 2, v0")
        A(f"buffer_store_dword v{vSt}, v254, s[84:87], s90 offen")
    def rbf(dst, src):
        A(f"v_cvt_pk_bf16_f32 v{dst}, v{src}, v{src}")
        A(f"v_and_b32 v{dst}, 0xffff0000, v{dst}")

    A("s_cmp_ge_u32 s2, 256")
    A(f"s_cbranch_scc1 {L('end')}")
    if perm == 1:
        A("s_lshr_b32 s4, s2, 3"); A("s_and_b32 s2, s2, 7"); A("s_lshl_b32 s2, s2, 5"); A("s_or_b32 s2, s2, s4")
    if perm == 2:
        A("s_and_b32 s4, s2, 7"); A("s_bfe_u32 s5, s2, 0x20003"); A("s_andn2_b32 s2, s2, 31")
        A("s_lshl_b32 s4, s4, 2"); A("s_or_b32 s2, s2, s4"); A("s_or_b32 s2, s2, s5")
    A("s_load_dwordx16 s[16:31], s[0:1], 0")
    A("s_load_dwordx8 s[32:39], s[0:1], 64")
    A("s_load_dwordx2 s[40:41], s[0:1], 96")
    if stamps:
        A("s_mov_b32 s92, 0"); A(f"v_mov_b32 v{vSt}, 0")
        stamp()
    A("v_lshrrev_b32 v2, 6, v0")
    A(f"v_and_b32 v{vLane}, 63, v0")
    A(f"v_readfirstlane_b32 s{sWave}, v2")
    A(f"s_lshr_b32 s{sB}, s2, 5")
    A(f"s_and_b32 s{sH}, s2, 31")
    A(f"v_and_b32 v8, 1, v{vLane}")
    A("v_lshlrev_b32 v8, 4, v8")
    A("v_mov_b32 v9, 0xffff")
    A("v_lshlrev_b32 v8, v8, v9")
    A(f"v_bfe_u32 v9, v{vLane}, 1, 3")
    for m in range(4):
        A(f"v_cmp_eq_u32 vcc, {m}, v9")
        nop(1)
        A(f"v_cndmask_b32 v{vMask[m]}, 0, v8, vcc")
    A(f"s_cmp_ge_u32 s{sWave}, 4")
    A(f"s_cbranch_scc1 {L('helper')}")

    vKoff, vVoff = 2, 3
    vM, vLs, vS = 8, 9, 10
    vT = [11, 12, 13, 14, 15]
    D = 16
    O = 20
    vP = [24, 25]
    vS2 = 26
    vLds = 28
    vMg, vRl = 29, 30
    vStg = 31
    BQ = 32
    RING = 64
    TMP = RING + RG * 16
    sK, sV = 44, 48
    sKpos, sVpos, sCnt = 52, 53, 54
    STEP = 16384

    A(f"v_and_b32 v{vKoff}, 3, v{vLane}")
    A(f"v_lshlrev_b32 v{vKoff}, 4, v{vKoff}")
    A(f"v_bfe_u32 v10, v{vLane}, 2, 2")
    A(f"v_lshl_add_u32 v{vKoff}, v10, 8, v{vKoff}")
    A(f"v_lshrrev_b32 v10, 4, v{vLane}")
    A(f"v_lshl_add_u32 v{vKoff}, v10, 6, v{vKoff}")
    A(f"v_lshlrev_b32 v{vVoff}, 4, v{vLane}")
    A("s_lshl_b32 s55, s2, 21")
    A(f"s_lshl_b32 s{sKpos}, s{sWave}, 12")
    A(f"s_mov_b32 s{sVpos}, s{sKpos}")
    A("s_waitcnt lgkmcnt(0)")
    A(f"s_add_u32 s{sK}, s18, s55"); A(f"s_addc_u32 s{sK+1}, s19, 0")
    A(f"s_mov_b32 s{sK+2}, 0x200000"); A(f"s_mov_b32 s{sK+3}, 0x20000")
    A(f"s_add_u32 s{sV}, s20, s55"); A(f"s_addc_u32 s{sV+1}, s21, 0")
    A(f"s_mov_b32 s{sV+2}, 0x200000"); A(f"s_mov_b32 s{sV+3}, 0x20000")

    st = {"last": -1, "known": -1}
    def wait_vm(n):
        A(f"s_waitcnt vmcnt({n})")
        st["known"] = max(st["known"], st["last"] - n)
    def need(l):
        assert l <= st["last"]
        if st["known"] < l: wait_vm(st["last"] - l)
    def issue(cap=None):
        l = st["last"] + 1
        if l >= 1024: return
        if cap is not None and st["known"] < l - cap: wait_vm(cap - 1)
        kind = "k" if l < 512 else "v"
        srd, pos, vo = (sK, sKpos, vKoff) if kind == "k" else (sV, sVpos, vVoff)
        t = l % 4
        if R <= l < R + E:
            if t == 0:
                A(f"s_add_u32 m0, s{sStg}, {(l - R) * 1024}")
                nop(0)
            A(f"buffer_load_dwordx4 v{vo}, s[{srd}:{srd+3}], s{pos} offen offset:{t*1024} {pol} lds")
        else:
            assert (l - R) in done or l < R, l
            r = RING + (l % R) * 4
            A(f"buffer_load_dwordx4 v[{r}:{r+3}], v{vo}, s[{srd}:{srd+3}], s{pos} offen offset:{t*1024} {pol}")
        if t == 3: A(f"s_add_u32 s{pos}, s{pos}, {STEP}")
        st["last"] = l
    done = set()
    sStg = 56
    A(f"s_mul_i32 s{sStg}, s{sWave}, {E*1024}")
    A(f"s_add_u32 s{sStg}, s{sStg}, {L_STG}")

    if sprio: A(f"s_setprio {sprio}")
    for l in range(R + E):
        issue(PDL)
        if pst and l % 8 == 7: stamp()
    A(f"v_mov_b32 v{vM}, 0xff7fffff")
    A(f"v_mov_b32 v{vLs}, 0")
    A(f"v_mov_b32 v{vS}, 0")
    A(f"s_lshl_b32 s55, s{sWave}, 13")
    A(f"s_add_u32 s55, s55, {L_SC}")
    A(f"v_lshl_add_u32 v{vLds}, v{vLane}, 2, s55")
    for r in range(4): A(f"v_mov_b32 v{O+r}, 0")
    A(f"v_add_u32 v{vStg}, s{sStg}, v{vVoff}")
    A(f"v_lshrrev_b32 v{vT[0]}, 2, v{vLane}")
    A(f"v_lshlrev_b32 v{vT[0]}, 5, v{vT[0]}")
    A(f"v_and_b32 v{vT[1]}, 3, v{vLane}")
    stamp()
    A("s_barrier")
    stamp()
    for w in range(4):
        for hlf in range(2):
            r = TMP + w * 8 + hlf * 4
            A(f"ds_read_b128 v[{r}:{r+3}], v{vT[0]} offset:{L_QP + w*512 + hlf*16}")
    A("s_waitcnt lgkmcnt(0)")
    for e in range(8):
        A(f"v_add_f32 v{TMP+e}, v{TMP+e}, v{TMP+8+e}")
        A(f"v_add_f32 v{TMP+16+e}, v{TMP+16+e}, v{TMP+24+e}")
    for e in range(8):
        A(f"v_add_f32 v{TMP+e}, v{TMP+e}, v{TMP+16+e}")
    for m in range(4):
        A(f"v_cvt_pk_bf16_f32 v{TMP+8+m}, v{TMP+2*m}, v{TMP+2*m+1}")
    for t in range(4):
        A(f"v_cmp_eq_u32 vcc, {t}, v{vT[1]}")
        nop(1)
        for m in range(4):
            A(f"v_cndmask_b32 v{BQ+4*t+m}, 0, v{TMP+8+m}, vcc")
    nop(1)

    cnt = {"c": 0}
    plan = {}
    capo = {"w": 0}
    def capf(): return capo["w"] or pat[(st["last"] + 1) % len(pat)]
    def consume(l, mfma):
        n_iss = plan.get(cnt["c"], 1)
        pre = (RD == pat[0] and len(pat) == 1 and (st["last"] + 1 - R) in done and st["last"] + 1 >= R + E)
        need(l)
        if pre:
            for _ in range(n_iss): issue(capf())
        A(mfma)
        done.add(l)
        if not pre:
            for _ in range(n_iss): issue(capf())
        cnt["c"] += 1
    def kstep(j):
        n = j % RG
        u = j % 4
        for t in range(4):
            l = 4 * j + t
            r = RING + (l % R) * 4
            c = "0" if t == 0 else f"v[{D}:{D+3}]"
            consume(l, f"v_mfma_f32_16x16x32_bf16 v[{D}:{D+3}], v[{r}:{r+3}], v[{BQ+4*t}:{BQ+4*t+3}], {c}")
        if 4 * j < E:
            need(R + 4 * j + 3)
            for t in range(4):
                l = 4 * j + t
                r = RING + l * 4
                A(f"ds_read_b128 v[{r}:{r+3}], v{vStg} offset:{l*1024}")
            nop(3)
        else:
            nop(7)
        a, b, c = u ^ 1, u ^ 2, u ^ 3
        A(f"v_add_f32_dpp v{vT[0]}, v{D+b}, v{D+u} row_ror:8 row_mask:0xf bank_mask:0xf")
        A(f"v_add_f32_dpp v{vT[1]}, v{D+c}, v{D+a} row_ror:8 row_mask:0xf bank_mask:0xf")
        nop(1)
        A(f"v_add_f32_dpp v{vS}, v{vT[1]}, v{vT[0]} row_ror:{4 if u & 1 else 12} row_mask:0xf bank_mask:{hex(1 << u)}")
        if u == 3:
            rbf(vT[2], vS)
            A(f"v_mul_f32 v{vT[2]}, {SCALE}, v{vT[2]}")
            rbf(vT[2], vT[2])
            A(f"ds_write_b32 v{vLds}, v{vT[2]} offset:{(n//4)*256}")
            A(f"v_max_f32 v{vT[3]}, v{vM}, v{vT[2]}")
            A(f"v_sub_f32 v{vT[0]}, v{vM}, v{vT[3]}")
            A(f"v_sub_f32 v{vT[1]}, v{vT[2]}, v{vT[3]}")
            A(f"v_mul_f32 v{vT[0]}, {LOG2E}, v{vT[0]}")
            A(f"v_mul_f32 v{vT[1]}, {LOG2E}, v{vT[1]}")
            A(f"v_exp_f32 v{vT[0]}, v{vT[0]}")
            A(f"v_exp_f32 v{vT[1]}, v{vT[1]}")
            A(f"v_mov_b32 v{vM}, v{vT[3]}")
            A(f"v_fma_f32 v{vLs}, v{vLs}, v{vT[0]}, v{vT[1]}")
    def spread(c0, n_consume, n_issue, first):
        for c in range(c0, c0 + n_consume): plan[c] = 0
        first = min(first, n_issue)
        for k in range(first): plan[c0 + k] += 1
        rest = n_issue - first
        for k in range(rest):
            c = c0 + first + ((k + 1) * (n_consume - first)) // rest - 1
            plan[c] += 1
    def rel(): return (st["last"] - cnt["c"], st["known"] - cnt["c"])
    def skip_iters(n):
        st["last"] += R * n; st["known"] += R * n
        for l in range(cnt["c"], cnt["c"] + R * n): done.add(l)
        cnt["c"] += R * n

    NIT = 128 // RG
    NP = 2 if E else 1
    spread(0, NP * R, NP * R - 1 + RD - st["last"], max(pat))
    order = list(range(RG))
    if E: order = order[E // 4:] + order[:E // 4]
    for j in order: kstep(j)
    A(f"v_add_u32 v{vLds}, {RG*64}, v{vLds}")
    stamp()
    if E:
        A("s_waitcnt lgkmcnt(0)")
        for j in range(RG, 2 * RG): kstep(j)
        A(f"v_add_u32 v{vLds}, {RG*64}, v{vLds}")
        stamp()
    assert st["last"] == NP * R - 1 + RD
    st["known"] = min(st["known"], st["last"] - pat[st["last"] % len(pat)])
    r0 = rel()
    A(f"s_mov_b32 s{sCnt}, {NIT-1-NP}")
    LBL(L("kloop"))
    for j in range(NP * RG, (NP + 1) * RG): kstep(j)
    A(f"v_add_u32 v{vLds}, {RG*64}, v{vLds}")
    stamp()
    A(f"s_sub_u32 s{sCnt}, s{sCnt}, 1")
    A(f"s_cmp_lg_u32 s{sCnt}, 0")
    A(f"s_cbranch_scc1 {L('kloop')}")
    assert rel() == r0, (rel(), r0)
    skip_iters(NIT - 2 - NP)
    for j in range(128 - RG, 128): kstep(j)
    assert st["last"] == 511 + RD
    stamp()
    for _ in range(MIDA): issue()
    A(f"v_subrev_u32 v{vLds}, {8192 - RG*64}, v{vLds}")
    A(f"v_mov_b32 v{vT[0]}, v{vM}")
    wave_reduce(vT[0], "max", vT[2])
    A(f"v_sub_f32 v{vT[0]}, v{vM}, v{vT[2]}")
    A(f"v_mul_f32 v{vT[0]}, {LOG2E}, v{vT[0]}")
    A(f"v_exp_f32 v{vT[0]}, v{vT[0]}")
    nop(0)
    A(f"v_mul_f32 v{vT[0]}, v{vLs}, v{vT[0]}")
    for _ in range(MIDB): issue()
    wave_reduce(vT[0], "add", vT[3])
    A(f"v_mov_b32 v{D}, v{vT[2]}")
    A(f"v_mov_b32 v{D+1}, v{vT[3]}")
    A(f"s_lshl_b32 s55, s{sWave}, 3")
    A(f"v_mov_b32 v{vT[0]}, s55")
    A(f"v_mov_b32 v{vT[1]}, 0")
    A("s_mov_b64 exec, 1")
    A(f"ds_write_b64 v{vT[0]}, v[{D}:{D+1}] offset:{L_ST}")
    A("s_mov_b64 exec, -1")
    A(f"ds_read2st64_b32 v[{vS2}:{vS2+1}], v{vLds} offset0:0 offset1:1")
    for _ in range(MIDC): issue()
    A("s_waitcnt lgkmcnt(0)")
    stamp()
    A("s_barrier")
    stamp()
    A(f"ds_read_b128 v[{TMP}:{TMP+3}], v{vT[1]} offset:{L_ST}")
    A(f"ds_read_b128 v[{TMP+4}:{TMP+7}], v{vT[1]} offset:{L_ST+16}")
    A("s_waitcnt lgkmcnt(0)")
    A(f"v_max3_f32 v{vMg}, v{TMP}, v{TMP+2}, v{TMP+4}")
    A(f"v_max_f32 v{vMg}, v{vMg}, v{TMP+6}")
    for w in range(4):
        A(f"v_sub_f32 v{TMP+2*w}, v{TMP+2*w}, v{vMg}")
        A(f"v_mul_f32 v{TMP+2*w}, {LOG2E}, v{TMP+2*w}")
        A(f"v_exp_f32 v{TMP+2*w}, v{TMP+2*w}")
    nop(0)
    A(f"v_mul_f32 v{vT[0]}, v{TMP}, v{TMP+1}")
    for w in range(1, 4):
        A(f"v_fma_f32 v{vT[0]}, v{TMP+2*w}, v{TMP+2*w+1}, v{vT[0]}")
    A(f"v_rcp_f32 v{vRl}, v{vT[0]}")
    nop(0)
    A(f"v_fma_f32 v{vT[1]}, -v{vT[0]}, v{vRl}, 1.0")
    A(f"v_fma_f32 v{vRl}, v{vT[1]}, v{vRl}, v{vRl}")

    assert RG == 8, "V loop is written for 2 P registers per iteration"
    def vhead():
        stamp()
        A("s_waitcnt lgkmcnt(0)")
        for i in range(2): A(f"v_sub_f32 v{vP[i]}, v{vS2+i}, v{vMg}")
        for i in range(2): A(f"v_mul_f32 v{vP[i]}, {LOG2E}, v{vP[i]}")
        for i in range(2): A(f"v_exp_f32 v{vP[i]}, v{vP[i]}")
        A(f"v_add_u32 v{vLds}, 512, v{vLds}")
        for i in range(2): A(f"v_mul_f32 v{vP[i]}, v{vP[i]}, v{vRl}")
        for i in range(2): A(f"v_cvt_pk_bf16_f32 v{vP[i]}, v{vP[i]}, v{vP[i]}")
        A(f"ds_read2st64_b32 v[{vS2}:{vS2+1}], v{vLds} offset0:0 offset1:1")
        nop(0)
    def vstep(j):
        n = j % RG
        u = j % 4
        p = vP[n // 4]
        for t in range(4):
            for m in range(4):
                A(f"v_and_b32_dpp v{BQ+4*t+m}, v{p}, v{vMask[m]} row_newbcast:{u*4+t} row_mask:0xf bank_mask:0xf")
        for t in range(4):
            l = 4 * j + t
            r = RING + (l % R) * 4
            consume(l, f"v_mfma_f32_16x16x32_bf16 v[{O}:{O+3}], v[{BQ+4*t}:{BQ+4*t+3}], v[{r}:{r+3}], v[{O}:{O+3}]")
    spread(512, R, 512 + R - 1 + RD - st["last"], 2)
    vhead()
    for j in range(128, 128 + RG): vstep(j)
    assert st["last"] == 512 + R - 1 + RD
    st["known"] = min(st["known"], st["last"] - pat[st["last"] % len(pat)])
    r0 = rel()
    A(f"s_mov_b32 s{sCnt}, {NIT-1-NE}")
    LBL(L("vloop"))
    vhead()
    for j in range(128 + RG, 128 + 2 * RG): vstep(j)
    A(f"s_sub_u32 s{sCnt}, s{sCnt}, 1")
    A(f"s_cmp_lg_u32 s{sCnt}, 0")
    A(f"s_cbranch_scc1 {L('vloop')}")
    assert rel() == r0, (rel(), r0)
    skip_iters(NIT - 2 - NE)
    if WE:
        capo["w"] = WE
        for k in range(WE + 2 - RD): plan[cnt["c"] + 2 * k] = 2
    for it in range(NE):
        vhead()
        for j in range(256 - (NE - it) * RG, 256 - (NE - it - 1) * RG): vstep(j)
    assert st["last"] == 1023
    A(f"v_and_b32 v{vT[0]}, 15, v{vLane}")
    A(f"v_lshlrev_b32 v{vT[0]}, 5, v{vT[0]}")
    A(f"v_lshrrev_b32 v{vT[1]}, 4, v{vLane}")
    A(f"v_lshl_add_u32 v{vT[0]}, v{vT[1]}, 4, v{vT[0]}")
    A(f"s_lshl_b32 s55, s{sWave}, 9")
    A(f"v_add_u32 v{vT[0]}, s55, v{vT[0]}")
    A("s_mov_b32 exec_hi, 0")
    nop(2)
    A(f"ds_write_b128 v{vT[0]}, v[{O}:{O+3}] offset:{L_OP}")
    A("s_waitcnt lgkmcnt(0)")
    stamp()
    A("s_barrier")
    stamp()
    stamp_flush()
    A("s_endpgm")

    LBL(L("helper"))
    sHW = 44
    sX, sW, sWS, sDbg, sOut = 48, 52, 64, 68, 72
    sOff = 45
    vG, vC = 2, 3
    vX4 = 8
    vXs = 12
    vXf = 16
    vMu, vMb, vDen, vRd = 24, 25, 26, 27
    vA = 28
    vAcc = 36
    hT = [40, 41, 42, 43, 44, 45, 46, 47]
    vWoff = 48
    vPO = 49
    vH = 52
    vOld = 53
    vKeep, vGo = 14, 15
    sEH = 84 if not stamps else 93
    vTog = 8
    vGres = 56
    vGc0, vGc1 = 57, 58
    vFin = 60
    vXo = 50
    W = 64
    PW = 192
    A("s_setprio 3")
    A(f"s_sub_u32 s{sHW}, s{sWave}, 4")
    A(f"v_lshrrev_b32 v{vG}, 4, v{vLane}")
    A(f"v_and_b32 v{vC}, 15, v{vLane}")
    A(f"v_lshlrev_b32 v{hT[0]}, 4, v{vLane}")
    A(f"s_lshl_b32 s56, s{sB}, 2")
    if not rot: A("s_mov_b32 s56, 0")
    A(f"v_add_u32 v{hT[1]}, s56, v{vC}")
    A(f"v_add_u32 v{hT[2]}, 16, v{hT[1]}")
    A(f"v_and_b32 v{hT[1]}, 31, v{hT[1]}")
    A(f"v_and_b32 v{hT[2]}, 31, v{hT[2]}")
    A(f"v_lshlrev_b32 v{hT[1]}, 3, v{hT[1]}")
    A(f"v_lshlrev_b32 v{hT[2]}, 3, v{hT[2]}")
    A(f"v_lshl_add_u32 v{hT[1]}, v{vG}, 1, v{hT[1]}")
    A(f"v_lshl_add_u32 v{hT[2]}, v{vG}, 1, v{hT[2]}")
    A(f"s_lshl_b32 s{sOff}, s56, 15")
    A(f"v_lshlrev_b32 v{vWoff}, 4, v{vC}")
    A(f"v_lshl_add_u32 v{vWoff}, v{vG}, 13, v{vWoff}")
    A(f"v_lshlrev_b32 v{vPO}, 5, v{vC}")
    A(f"v_lshl_add_u32 v{vPO}, v{vG}, 4, v{vPO}")
    A(f"s_lshl_b32 s46, s{sB}, 10")
    A(f"s_lshl_b32 s47, s{sHW}, 8")
    A(f"s_lshl_b32 s57, s{sHW}, 20")
    A(f"s_lshl_b32 s56, s{sH}, 8")
    A(f"s_add_u32 s57, s57, s56")
    A("s_waitcnt lgkmcnt(0)")
    A(f"s_add_u32 s{sX}, s16, s46"); A(f"s_addc_u32 s{sX+1}, s17, 0")
    A(f"s_mov_b32 s{sX+2}, 1024"); A(f"s_mov_b32 s{sX+3}, 0x20000")
    A(f"s_add_u32 s{sW}, s22, s57"); A(f"s_addc_u32 s{sW+1}, s23, 0")
    A(f"s_sub_u32 s{sW+2}, 0x100000, s56"); A(f"s_mov_b32 s{sW+3}, 0x20000")
    if nowq == 1: A(f"s_mov_b32 s{sW+2}, 0")
    A(f"buffer_load_dwordx4 v[{vX4}:{vX4+3}], v{hT[0]}, s[{sX}:{sX+3}], 0 offen")
    A(f"buffer_load_ushort v{vXs}, v{hT[1]}, s[{sX}:{sX+3}], s47 offen")
    A(f"buffer_load_ushort v{vXs+1}, v{hT[2]}, s[{sX}:{sX+3}], s47 offen")
    hs = {"last": -1}
    def wq_issue(i):
        assert i == hs["last"] + 1
        if nowq != 2: A(f"buffer_load_dwordx4 v[{W+4*i}:{W+4*i+3}], v{vWoff}, s[{sW}:{sW+3}], s{sOff} offen {wpol}")
        if i < 31:
            A(f"s_add_u32 s{sOff}, s{sOff}, 32768")
            A(f"s_and_b32 s{sOff}, s{sOff}, 0xfffff")
        hs["last"] = i
    for i in range(HW0): wq_issue(i)
    A(f"s_lshl_b32 s56, s{sH}, 5")
    A(f"s_lshl_b32 s57, s{sHW}, 3")
    A("s_add_u32 s56, s56, s57")
    A(f"s_add_u32 s58, s{sX}, s56"); A(f"s_addc_u32 s59, s{sX+1}, 0")
    A("s_load_dwordx2 s[76:77], s[58:59], 0")
    A("s_load_dword s78, s[34:35], 0")

    def unpack8(src, dst):
        for i in range(4):
            A(f"v_lshlrev_b32 v{dst+2*i}, 16, v{src+i}")
            A(f"v_and_b32 v{dst+2*i+1}, 0xffff0000, v{src+i}")
    def ln_stats(xf, mb, den, rd):
        t0, t1, t2 = hT[0], hT[1], hT[2]
        A(f"v_add_f32 v{t0}, v{xf}, v{xf+1}")
        A(f"v_add_f32 v{t1}, v{xf+2}, v{xf+3}")
        A(f"v_add_f32 v{t2}, v{xf+4}, v{xf+5}")
        A(f"v_add_f32 v{t0}, v{t0}, v{t1}")
        A(f"v_add_f32 v{t1}, v{xf+6}, v{xf+7}")
        A(f"v_add_f32 v{t1}, v{t1}, v{t2}")
        A(f"v_add_f32 v{t0}, v{t0}, v{t1}")
        wave_reduce(t0, "add", vMu)
        A(f"v_mul_f32 v{vMu}, {f32(1/512)}, v{vMu}")
        A(f"v_sub_f32 v{t1}, v{xf}, v{vMu}")
        A(f"v_mul_f32 v{t0}, v{t1}, v{t1}")
        for i in range(1, 8):
            A(f"v_sub_f32 v{t1}, v{xf+i}, v{vMu}")
            A(f"v_fma_f32 v{t0}, v{t1}, v{t1}, v{t0}")
        wave_reduce(t0, "add", den)
        A(f"v_mul_f32 v{den}, {f32(1/512)}, v{den}")
        rbf(mb, vMu)
        rbf(den, den)
        A(f"v_add_f32 v{den}, {f32(1e-5)}, v{den}")
        rbf(den, den)
        A(f"v_sqrt_f32 v{den}, v{den}")
        nop(0)
        rbf(den, den)
        A(f"v_rcp_f32 v{rd}, v{den}")
        nop(0)
    def ln_apply(v, mb, den, rd, tmp):
        A(f"v_sub_f32 v{v}, v{v}, v{mb}")
        rbf(v, v)
        A(f"v_mul_f32 v{tmp}, v{v}, v{rd}")
        A(f"v_fma_f32 v{v}, -v{tmp}, v{den}, v{v}")
        A(f"v_fma_f32 v{v}, v{v}, v{rd}, v{tmp}")

    stamp()
    A(f"s_waitcnt vmcnt({HW0+2})")
    stamp()
    unpack8(vX4, vXf)
    ln_stats(vXf, vMb, vDen, vRd)
    A(f"s_waitcnt vmcnt({HW0})")
    for k in range(2):
        A(f"v_lshlrev_b32 v{vXs+k}, 16, v{vXs+k}")
        ln_apply(vXs + k, vMb, vDen, vRd, hT[0])
        A(f"v_cvt_pk_bf16_f32 v{vXs+k}, v{vXs+k}, v{vXs+k}")
    nop(1)
    def diag_matvec(src, waits):
        def mkA(i):
            for m in range(4):
                A(f"v_and_b32_dpp v{vA+4*(i&1)+m}, v{src+(i>>4)}, v{vMask[m]} row_newbcast:{i&15} row_mask:0xf bank_mask:0xf")
        mkA(0)
        for i in range(32):
            if i < 31: mkA(i + 1)
            else: nop(1)
            if waits:
                A(f"s_waitcnt vmcnt({hs['last']-i})")
                if i + HT > hs["last"] and i + HT < 32: wq_issue(i + HT)
            c = "0" if i == 0 else f"v[{vAcc}:{vAcc+3}]"
            a = vA + 4 * (i & 1)
            A(f"v_mfma_f32_16x16x32_bf16 v[{vAcc}:{vAcc+3}], v[{a}:{a+3}], v[{W+4*i}:{W+4*i+3}], {c}")
    stamp()
    diag_matvec(vXs, True)
    stamp()
    A(f"s_lshl_b32 s56, s{sHW}, 9")
    A(f"v_add_u32 v{hT[0]}, s56, v{vPO}")
    A("s_mov_b32 exec_hi, 0")
    nop(5)
    A(f"ds_write_b128 v{hT[0]}, v[{vAcc}:{vAcc+3}] offset:{L_QP}")
    A("s_mov_b32 exec_hi, -1")
    A("s_waitcnt lgkmcnt(0)")
    A("s_barrier")
    stamp()
    A(f"s_mov_b32 s{sWS}, s40"); A(f"s_mov_b32 s{sWS+1}, s41")
    A(f"s_mov_b32 s{sWS+2}, {WS_BYTES}"); A(f"s_mov_b32 s{sWS+3}, 0x20000")
    A(f"s_mov_b32 s{sDbg}, s38"); A(f"s_mov_b32 s{sDbg+1}, s39")
    A(f"s_mov_b32 s{sDbg+2}, 256"); A(f"s_mov_b32 s{sDbg+3}, 0x20000")
    A(f"s_mov_b32 s{sOut}, s36"); A(f"s_mov_b32 s{sOut+1}, s37")
    A(f"s_mov_b32 s{sOut+2}, 8192"); A(f"s_mov_b32 s{sOut+3}, 0x20000")
    A(f"s_lshl_b32 s79, s{sB}, 2")
    A(f"s_add_u32 s79, s79, s{sHW}")
    A("s_lshl_b32 s79, s79, 14")
    A(f"s_lshl_b32 s80, s{sH}, 9")
    A("s_add_u32 s80, s80, s79")
    A(f"s_lshl_b32 s81, s{sB}, 11")
    A(f"s_add_u32 s81, s81, {WS_GATE}")
    A(f"s_lshl_b32 s56, s{sH}, 6")
    A("s_add_u32 s56, s56, s81")
    A("s_sub_u32 s56, s56, 512")
    A(f"v_add_u32 v{vPO}, s80, v{vPO}")
    A(f"v_mov_b32 v{vKeep}, -2")
    A("s_mov_b32 exec_lo, 0")
    A(f"v_lshl_add_u32 v{vPO}, v{vLane}, 4, s56")
    A(f"v_mov_b32 v{vKeep}, 0")
    A("s_mov_b32 exec_lo, -1")
    A(f"s_lshr_b32 s56, s{sH}, 3")
    A(f"s_cmp_eq_u32 s56, s{sHW}")
    A(f"s_cselect_b32 s{sEH}, 15, 0")
    A(f"s_mov_b32 exec_hi, s{sEH}")
    A(f"buffer_load_dwordx4 v[{vTog}:{vTog+3}], v{vPO}, s[{sWS}:{sWS+3}], 0 offen sc1")
    A("s_mov_b32 exec_hi, -1")
    A(f"s_lshl_b32 s82, s{sB}, 2")
    A(f"s_add_u32 s83, s82, s{sHW}")
    A(f"s_lshl_b32 s56, s{sHW}, 9")
    A("s_add_u32 s81, s81, s56")
    A(f"v_and_b32 v{hT[2]}, 31, v{vLane}")
    A(f"v_lshlrev_b32 v{vGo}, 4, v{hT[2]}")
    A(f"s_cmp_lg_u32 s83, s{sH}")
    A(f"s_cbranch_scc1 {L('noold')}")
    A(f"v_lshlrev_b32 v{hT[0]}, 4, v{vLane}")
    A(f"v_lshlrev_b32 v{hT[3]}, 3, v{hT[2]}")
    A("s_mov_b32 s56, s79")
    for i in range(16):
        A(f"buffer_load_dwordx4 v[{W+4*i}:{W+4*i+3}], v{hT[0]}, s[{sWS}:{sWS+3}], s56 offen offset:{(i%4)*1024} sc1")
        if i % 4 == 3 and i < 15: A("s_add_u32 s56, s56, 4096")
    A(f"buffer_load_dwordx4 v[{vFin}:{vFin+3}], v{vGo}, s[{sWS}:{sWS+3}], s81 offen sc1")
    A(f"buffer_load_dwordx2 v[{vXo}:{vXo+1}], v{hT[3]}, s[{sX}:{sX+3}], s47 offen")
    A("s_waitcnt vmcnt(0)")
    for i in range(64):
        o = vOld + i // 32
        A(f"v_alignbit_b32 v{o}, v{W+i}, v{o}, 1")
    for r in range(4): A(f"v_alignbit_b32 v{vOld+2}, v{vFin+r}, v{vOld+2}, 1")
    A(f"v_mov_b32 v{hT[0]}, 0")
    A(f"v_mov_b32 v{hT[1]}, 1")
    A(f"s_lshl_b32 s56, s83, 2")
    A("s_mov_b64 exec, 1")
    A(f"buffer_store_dword v{hT[1]}, v{hT[0]}, s[{sDbg}:{sDbg+3}], s56 offen sc1")
    A("s_mov_b64 exec, -1")
    LBL(L("noold"))
    A(f"v_lshlrev_b32 v{hT[7]}, 3, v{vLane}")
    for a_i, ptr in enumerate((28, 30, 32)):
        A(f"s_mov_b32 s{sW}, s{ptr}"); A(f"s_mov_b32 s{sW+1}, s{ptr+1}")
        A(f"s_mov_b32 s{sW+2}, 3584"); A(f"s_mov_b32 s{sW+3}, 0x20000")
        for i in range(7):
            r = PW + a_i * 14 + 2 * i
            A(f"buffer_load_dwordx2 v[{r}:{r+1}], v{hT[7]}, s[{sW}:{sW+3}], 0 offen offset:{i*512}")
    stamp()
    A("s_setprio 0")
    for i in range(8):
        ln_apply(vXf + i, vMb, vDen, vRd, hT[0])
        rbf(vXf + i, vXf + i)
    A("s_lshl_b32 s56, s76, 16"); A(f"v_mov_b32 v{vH}, s56")
    A("s_and_b32 s56, s76, 0xffff0000"); A(f"v_writelane_b32 v{vH}, s56, 1")
    A("s_lshl_b32 s56, s77, 16"); A(f"v_writelane_b32 v{vH}, s56, 2")
    A("s_and_b32 s56, s77, 0xffff0000"); A(f"v_writelane_b32 v{vH}, s56, 3")
    A("s_lshl_b32 s78, s78, 16")
    ln_apply(vH, vMb, vDen, vRd, hT[0])
    rbf(vH, vH)
    ln_stats(vXf, vMb, vDen, vRd)
    ln_apply(vH, vMb, vDen, vRd, hT[0])
    rbf(vH, vH)
    A(f"v_mov_b32 v{vGc0}, {f32(GC0)}")
    A(f"v_mov_b32 v{vGc1}, {f32(GC1)}")
    A(f"v_mov_b32 v{vGres}, 0")
    stamp()
    A("s_waitcnt vmcnt(0)")
    stamp()
    for a_i in range(3):
        for i in range(14):
            A(f"v_lshlrev_b32 v{W+a_i*28+2*i}, 16, v{PW+a_i*14+i}")
            A(f"v_and_b32 v{W+a_i*28+2*i+1}, 0xffff0000, v{PW+a_i*14+i}")
    A("s_mov_b32 s57, 0")
    LBL(L("gate"))
    u0, u1, t0, t1, pk, acc = hT[0], hT[1], hT[2], hT[3], hT[4], hT[5]
    A(f"v_readlane_b32 s58, v{vH}, s57")
    A(f"v_mov_b32 v{acc}, 0")
    nop(0)
    for i in range(14):
        w1, b1, w2 = W + 2 * i, W + 28 + 2 * i, W + 56 + 2 * i
        A(f"v_mul_f32 v{u0}, s58, v{w1}")
        A(f"v_mul_f32 v{u1}, s58, v{w1+1}")
        A(f"v_cvt_pk_bf16_f32 v{pk}, v{u0}, v{u1}")
        A(f"v_lshlrev_b32 v{u0}, 16, v{pk}")
        A(f"v_and_b32 v{u1}, 0xffff0000, v{pk}")
        A(f"v_add_f32 v{u0}, v{u0}, v{b1}")
        A(f"v_add_f32 v{u1}, v{u1}, v{b1+1}")
        A(f"v_cvt_pk_bf16_f32 v{pk}, v{u0}, v{u1}")
        A(f"v_lshlrev_b32 v{u0}, 16, v{pk}")
        A(f"v_and_b32 v{u1}, 0xffff0000, v{pk}")
        A(f"v_mul_f32 v{t0}, v{u0}, v{u0}")
        A(f"v_mul_f32 v{t1}, v{u1}, v{u1}")
        A(f"v_fma_f32 v{t0}, v{t0}, v{vGc1}, v{vGc0}")
        A(f"v_fma_f32 v{t1}, v{t1}, v{vGc1}, v{vGc0}")
        A(f"v_mul_f32 v{t0}, v{t0}, v{u0}")
        A(f"v_mul_f32 v{t1}, v{t1}, v{u1}")
        A(f"v_exp_f32 v{t0}, v{t0}")
        A(f"v_exp_f32 v{t1}, v{t1}")
        A(f"v_add_f32 v{t0}, 1.0, v{t0}")
        A(f"v_add_f32 v{t1}, 1.0, v{t1}")
        A(f"v_rcp_f32 v{t0}, v{t0}")
        A(f"v_rcp_f32 v{t1}, v{t1}")
        A(f"v_mul_f32 v{u0}, v{u0}, v{t0}")
        A(f"v_mul_f32 v{u1}, v{u1}, v{t1}")
        A(f"v_cvt_pk_bf16_f32 v{pk}, v{u0}, v{u1}")
        A(f"v_lshlrev_b32 v{u0}, 16, v{pk}")
        A(f"v_and_b32 v{u1}, 0xffff0000, v{pk}")
        A(f"v_fma_f32 v{acc}, v{u0}, v{w2}, v{acc}")
        A(f"v_fma_f32 v{acc}, v{u1}, v{w2+1}, v{acc}")
    wave_reduce(acc, "add", u0)
    rbf(u0, u0)
    A(f"v_add_f32 v{u0}, s78, v{u0}")
    rbf(u0, u0)
    A(f"v_mul_f32 v{t0}, {f32(-math.log2(math.e))}, v{u0}")
    A(f"v_exp_f32 v{t0}, v{t0}")
    nop(0)
    A(f"v_add_f32 v{t0}, 1.0, v{t0}")
    A(f"v_rcp_f32 v{t1}, v{t0}")
    nop(0)
    A(f"v_mul_f32 v{u1}, v{u0}, v{t1}")
    rbf(u1, u1)
    A(f"v_cmp_eq_u32 vcc, s57, v{vLane}")
    nop(1)
    A(f"v_cndmask_b32 v{vGres}, v{vGres}, v{u1}, vcc")
    A("s_add_u32 s57, s57, 1")
    A("s_cmp_lt_u32 s57, 4")
    A(f"s_cbranch_scc1 {L('gate')}")
    A("s_setprio 3")
    A(f"s_lshl_b32 s56, s{sHW}, 4")
    A(f"v_lshl_add_u32 v{hT[0]}, v{vLane}, 2, s56")
    A("s_mov_b64 exec, 15")
    A(f"ds_write_b32 v{hT[0]}, v{vGres} offset:{L_G}")
    A("s_mov_b64 exec, -1")
    stamp()
    def wo_loads():
        A(f"s_mov_b32 s{sW}, s24"); A(f"s_mov_b32 s{sW+1}, s25")
        A(f"s_mov_b32 s{sW+2}, 0x400000"); A(f"s_mov_b32 s{sW+3}, 0x20000")
        A(f"v_lshlrev_b32 v{vWoff}, 4, v{vC}")
        A(f"v_lshl_add_u32 v{vWoff}, v{vG}, 10, v{vWoff}")
        A(f"s_lshl_b32 s{sOff}, s{sH}, 17")
        A(f"s_lshl_b32 s56, s{sHW}, 8")
        A(f"s_add_u32 s{sOff}, s{sOff}, s56")
        for i in range(0 if nowo else 32):
            if i >= WOT: A(f"s_waitcnt vmcnt({WOT-1})")
            A(f"buffer_load_dwordx4 v[{W+4*i}:{W+4*i+3}], v{vWoff}, s[{sW}:{sW+3}], s{sOff} offen {wpol}")
            if i < 31: A(f"s_add_u32 s{sOff}, s{sOff}, 4096")
        A("s_waitcnt vmcnt(0)")
    def ready_poll():
        A(f"s_cmp_lg_u32 s{sHW}, 0")
        A(f"s_cbranch_scc1 {L('cpoll_done')}")
        A(f"s_lshl_b32 s82, s{sB}, 4")
        A(f"v_mov_b32 v{hT[0]}, 0")
        A("s_mov_b32 s57, 0")
        LBL(L("cpoll"))
        A(f"buffer_load_dwordx4 v[{hT[4]}:{hT[7]}], v{hT[0]}, s[{sDbg}:{sDbg+3}], s82 offen sc1")
        A("s_waitcnt vmcnt(0)")
        A(f"v_and_b32 v{hT[4]}, v{hT[4]}, v{hT[5]}")
        A(f"v_and_b32 v{hT[6]}, v{hT[6]}, v{hT[7]}")
        A(f"v_and_b32 v{hT[4]}, v{hT[4]}, v{hT[6]}")
        A("s_add_u32 s57, s57, 1")
        A(f"v_readfirstlane_b32 s56, v{hT[4]}")
        A("s_cmp_ge_u32 s57, 0x400000")
        A(f"s_cbranch_scc1 {L('cpoll_done')}")
        A("s_cmp_lg_u32 s56, 0")
        A(f"s_cbranch_scc1 {L('cpoll_done')}")
        A("s_sleep 32")
        A(f"s_branch {L('cpoll')}")
        LBL(L("cpoll_done"))
    if WOP == 0: wo_loads()
    A("s_waitcnt vmcnt(0) lgkmcnt(0)")
    for r in range(4):
        A(f"v_and_b32 v{vTog+r}, 1, v{vTog+r}")
        A(f"v_xor_b32 v{vTog+r}, 1, v{vTog+r}")
    stamp()
    A("s_barrier")
    stamp()
    if WOP == 1: wo_loads()
    ready_poll()
    A(f"v_and_b32 v{hT[2]}, 3, v{vLane}")
    A(f"v_lshlrev_b32 v{hT[2]}, 4, v{hT[2]}")
    A(f"ds_read_b128 v[{hT[4]}:{hT[7]}], v{hT[2]} offset:{L_G}")
    A("s_waitcnt lgkmcnt(0)")
    A("s_mov_b32 exec_lo, 0")
    for r in range(4): A(f"v_or_b32 v{vTog+r}, v{vTog+r}, v{hT[4]+r}")
    A("s_mov_b32 exec_lo, -1")
    A(f"v_lshlrev_b32 v{hT[0]}, 4, v{vC}")
    A(f"v_lshl_add_u32 v{hT[0]}, v{vG}, 2, v{hT[0]}")
    A("s_setprio 3")
    stamp()
    A("s_barrier")
    stamp()
    for w in range(4):
        A(f"ds_read2st64_b32 v[{vXf+2*w}:{vXf+2*w+1}], v{hT[0]} offset0:{L_OP//256+2*w} offset1:{L_OP//256+2*w+1}")
    A("s_waitcnt lgkmcnt(0)")
    for k in range(2):
        A(f"v_add_f32 v{vXf+k}, v{vXf+k}, v{vXf+2+k}")
        A(f"v_add_f32 v{vXf+4+k}, v{vXf+4+k}, v{vXf+6+k}")
    for k in range(2):
        A(f"v_add_f32 v{vXf+k}, v{vXf+k}, v{vXf+4+k}")
    for k in range(2):
        A(f"v_cvt_pk_bf16_f32 v{vXs+k}, v{vXf+k}, v{vXf+k}")
    nop(1)
    diag_matvec(vXs, False)
    A(f"s_mov_b32 exec_hi, s{sEH}")
    nop(6)
    for r in range(4): A(f"v_and_or_b32 v{vAcc+r}, v{vAcc+r}, v{vKeep}, v{vTog+r}")
    A(f"buffer_store_dwordx4 v[{vAcc}:{vAcc+3}], v{vPO}, s[{sWS}:{sWS+3}], 0 offen sc1")
    A("s_mov_b32 exec_hi, -1")
    stamp()
    A(f"s_cmp_lg_u32 s83, s{sH}")
    A(f"s_cbranch_scc1 {L('hend')}")
    A(f"v_lshlrev_b32 v{hT[0]}, 4, v{vLane}")
    A("s_mov_b32 s57, 0")
    LBL(L("gpoll"))
    A("s_mov_b32 s56, s79")
    A(f"buffer_load_dwordx4 v[{vFin}:{vFin+3}], v{vGo}, s[{sWS}:{sWS+3}], s81 offen sc1")
    for i in range(16):
        A(f"buffer_load_dwordx4 v[{W+4*i}:{W+4*i+3}], v{hT[0]}, s[{sWS}:{sWS+3}], s56 offen offset:{(i%4)*1024} sc1")
        if i % 4 == 3 and i < 15: A("s_add_u32 s56, s56, 4096")
    for i in range(16):
        A(f"s_waitcnt vmcnt({15-i})")
        if i == 0:
            for r in range(4): A(f"v_alignbit_b32 v{hT[3]}, v{vFin+r}, v{hT[3]}, 1")
            A(f"v_xor_b32 v{hT[3]}, v{hT[3]}, v{vOld+2}")
            A(f"v_or_b32 v{hT[3]}, 0x0fffffff, v{hT[3]}")
            for r in range(4): A(f"v_and_b32 v{vFin+r}, 0xffff0000, v{vFin+r}")
        for r in range(4):
            n = hT[1] + (4 * i + r) // 32
            A(f"v_alignbit_b32 v{n}, v{W+4*i+r}, v{n}, 1")
        if i:
            for r in range(4):
                src = f"v{W+r}" if i == 1 else f"v{vAcc+r}"
                A(f"v_add_f32 v{vAcc+r}, {src}, v{W+4*i+r}")
    A(f"v_xor_b32 v{hT[1]}, v{hT[1]}, v{vOld}")
    A(f"v_xor_b32 v{hT[2]}, v{hT[2]}, v{vOld+1}")
    A(f"v_and_b32 v{hT[1]}, v{hT[1]}, v{hT[3]}")
    A(f"v_and_b32 v{hT[1]}, v{hT[1]}, v{hT[2]}")
    A(f"v_cmp_ne_u32 vcc, -1, v{hT[1]}")
    A("s_add_u32 s57, s57, 1")
    A("s_cmp_ge_u32 s57, 0x400000")
    A(f"s_cbranch_scc1 {L('gdone')}")
    nop(3)
    A(f"s_cbranch_vccnz {L('gpoll')}")
    LBL(L("gdone"))
    for r in range(4): A(f"v_mov_b32 v{hT[r]}, v{vAcc+r}")
    nop(1)
    for r in range(4): A(f"v_permlane32_swap_b32 v{hT[r]}, v{vAcc+r}")
    for r in range(4): A(f"v_add_f32 v{vAcc+r}, v{vAcc+r}, v{hT[r]}")
    for r in range(4): rbf(vAcc + r, vAcc + r)
    for r in range(4): A(f"v_mul_f32 v{vAcc+r}, v{vAcc+r}, v{vFin+r}")
    for r in range(4): rbf(vAcc + r, vAcc + r)
    A(f"v_lshlrev_b32 v{hT[0]}, 16, v{vXo}")
    A(f"v_and_b32 v{hT[1]}, 0xffff0000, v{vXo}")
    A(f"v_lshlrev_b32 v{hT[2]}, 16, v{vXo+1}")
    A(f"v_and_b32 v{hT[3]}, 0xffff0000, v{vXo+1}")
    for r in range(4): A(f"v_add_f32 v{vAcc+r}, v{vAcc+r}, v{hT[r]}")
    A(f"v_cvt_pk_bf16_f32 v{hT[4]}, v{vAcc}, v{vAcc+1}")
    A(f"v_cvt_pk_bf16_f32 v{hT[5]}, v{vAcc+2}, v{vAcc+3}")
    A(f"v_lshlrev_b32 v{hT[0]}, 3, v{vLane}")
    A("s_add_u32 s56, s46, s47")
    A("s_mov_b32 exec_hi, 0")
    A(f"buffer_store_dwordx2 v[{hT[4]}:{hT[5]}], v{hT[0]}, s[{sOut}:{sOut+3}], s56 offen")
    if stamps:
        A("s_waitcnt vmcnt(0)")
        A("s_mov_b64 exec, -1")
        stamp()
        A(f"v_writelane_b32 v{vSt}, s57, 62")
    LBL(L("hend"))
    stamp_flush()
    LBL(L("end"))
    A("s_endpgm")
    return "\n".join(out)

HEADER = open("cdna_kernels/" + NAME + ".s.ref").read().split("; Override launch geometry")[0]

def full(path, **kw):
    kname = NAME + "_kernel"
    body = gen(**kw)
    s = HEADER
    s += f"; @launch grid=(256,1,1) block=(512,1,1) lds={lds_bytes(**kw)}\n"
    s += '.amdgcn_target "amdgcn-amd-amdhsa--gfx950"\n.text\n'
    s += f".globl {kname}\n.p2align 8\n.type {kname},@function\n{kname}:\n"
    s += body + "\n"
    s += f""".section .rodata,"a"
.p2align 6
.amdhsa_kernel {kname}
  .amdhsa_next_free_vgpr 256
  .amdhsa_next_free_sgpr 96
  .amdhsa_accum_offset 256
  .amdhsa_group_segment_fixed_size 0
  .amdhsa_kernarg_size 104
  .amdhsa_user_sgpr_count 2
  .amdhsa_user_sgpr_kernarg_segment_ptr 1
  .amdhsa_system_sgpr_workgroup_id_x 1
  .amdhsa_float_denorm_mode_32 3
.end_amdhsa_kernel
"""
    open(path, "w").write(s)

if __name__ == "__main__":
    kw = {}
    path = "cdna_kernels/" + NAME + ".s"
    for a in sys.argv[1:]:
        k, v = a.split("=")
        if k == "out": path = v
        else: kw[k] = int(v) if v.lstrip("-").isdigit() else v
    full(path, **kw)
```

```python
import sys, struct
NAME = "recurrent_scan__mha_block_cached__mixer_token_mlp__decode"

def f32(x): return "0x%08x" % struct.unpack("<I", struct.pack("<f", x))[0]

import math
SCALE = f32(128 ** -0.5)
LOG2E = f32(math.log2(math.e))
GC0 = -2.0 * math.sqrt(2.0 / math.pi) * math.log2(math.e)
GC1 = GC0 * 0.044715

L_QP = 0
L_ST = 2048
L_OP = 4096
L_SC = 8192
L_G = 6144
L_PR = 2304
L_FL = 2320
L_HO = 2560
L_STG = L_SC + 32768 + 512
WS_PART = 0
WS_GATE = 512 * 1024
WS_CX = 0x200000
WS_CG = 0x280000
WS_BYTES = 0x300000
def lds_bytes(E=16, **kw): return L_STG + 4 * E * 1024

def gen(W="6", RD=8, PDL=8, E=16, HT=8, HW0=12, WOT=4, WOP=0, MIDA=1, MIDB=1, MIDC=2, kname=NAME + "_kernel", stamps=False, pol="nt", rot=1, sprio=1, wpol="nt", nowo=0, perm=0, pst=0, nowq=0, WE=0, NE=1, vpol=None, alt="", fst=0,
        ctl=0, LV="7:6:5", theta=48, bias=0, gbias=300, gn=4, slp=32, XK=6, XV=6, clamp=64, CK=3, CV=2, AK=12, AV=32):
    RG = 8
    wpol = wpol.replace("+", " ").replace("def", "")
    kpol = pol.replace("+", " ").replace("def", "")
    vpol = kpol if vpol is None else vpol.replace("+", " ").replace("def", "")
    pat = [int(c, 16) for c in str(W)]
    assert RD > max(pat) or RD == max(pat) == min(pat)
    assert E in (0, 16)
    lv = [[int(c, 16) for c in x] for x in LV.split(":")]
    assert RD > max(lv[0])
    R = 4 * RG
    out = []
    def A(s): out.append("    " + s)
    def LBL(s): out.append(s + ":")
    L = lambda s: f"L_{s}"

    vLane = 1
    vMask = [4, 5, 6, 7]
    sWave = 3
    sB, sH = 42, 43
    def nop(n): A(f"s_nop {n}")

    def wave_reduce(v, op, dst, st=60):
        for r in (8, 4, 2, 1):
            nop(1)
            A(f"v_{op}_f32_dpp v{v}, v{v}, v{v} row_ror:{r} row_mask:0xf bank_mask:0xf")
        nop(0)
        for i in range(4):
            A(f"v_readlane_b32 s{st+i}, v{v}, {16*i}")
        nop(0)
        A(f"v_mov_b32 v{dst}, s{st}")
        A(f"v_{op}_f32 v{dst}, s{st+1}, v{dst}")
        A(f"v_{op}_f32 v{dst}, s{st+2}, v{dst}")
        A(f"v_{op}_f32 v{dst}, s{st+3}, v{dst}")

    vSt = 255
    def stamp():
        if not stamps: return
        A("s_memrealtime s[90:91]")
        A("s_waitcnt lgkmcnt(0)")
        A("s_mov_b32 m0, s92")
        A(f"v_writelane_b32 v{vSt}, s90, m0")
        A("s_add_u32 s92, s92, 1")
    def stamp_flush():
        if not stamps: return
        A("s_mov_b64 exec, -1")
        A("s_getreg_b32 s90, hwreg(HW_REG_XCC_ID)")
        A(f"v_writelane_b32 v{vSt}, s90, 63")
        A("s_mov_b32 s84, s40"); A("s_mov_b32 s85, s41"); A("s_mov_b32 s86, 0x1000000"); A("s_mov_b32 s87, 0x20000")
        A("s_lshl_b32 s90, s2, 11")
        A("s_add_u32 s90, s90, 0x100000")
        A("v_lshlrev_b32 v254, 2, v0")
        A(f"buffer_store_dword v{vSt}, v254, s[84:87], s90 offen")
    def rbf(dst, src):
        A(f"v_cvt_pk_bf16_f32 v{dst}, v{src}, v{src}")
        A(f"v_and_b32 v{dst}, 0xffff0000, v{dst}")

    A("s_cmp_ge_u32 s2, 256")
    A(f"s_cbranch_scc1 {L('end')}")
    if perm == 1:
        A("s_lshr_b32 s4, s2, 3"); A("s_and_b32 s2, s2, 7"); A("s_lshl_b32 s2, s2, 5"); A("s_or_b32 s2, s2, s4")
    if perm == 2:
        A("s_and_b32 s4, s2, 7"); A("s_bfe_u32 s5, s2, 0x20003"); A("s_andn2_b32 s2, s2, 31")
        A("s_lshl_b32 s4, s4, 2"); A("s_or_b32 s2, s2, s4"); A("s_or_b32 s2, s2, s5")
    A("s_load_dwordx16 s[16:31], s[0:1], 0")
    A("s_load_dwordx8 s[32:39], s[0:1], 64")
    A("s_load_dwordx2 s[40:41], s[0:1], 96")
    if stamps:
        A("s_mov_b32 s92, 0"); A(f"v_mov_b32 v{vSt}, 0")
        stamp()
    A("v_lshrrev_b32 v2, 6, v0")
    A(f"v_and_b32 v{vLane}, 63, v0")
    A(f"v_readfirstlane_b32 s{sWave}, v2")
    A(f"s_lshr_b32 s{sB}, s2, 5")
    A(f"s_and_b32 s{sH}, s2, 31")
    A(f"v_and_b32 v8, 1, v{vLane}")
    A("v_lshlrev_b32 v8, 4, v8")
    A("v_mov_b32 v9, 0xffff")
    A("v_lshlrev_b32 v8, v8, v9")
    A(f"v_bfe_u32 v9, v{vLane}, 1, 3")
    for m in range(4):
        A(f"v_cmp_eq_u32 vcc, {m}, v9")
        nop(1)
        A(f"v_cndmask_b32 v{vMask[m]}, 0, v8, vcc")
    A(f"s_cmp_ge_u32 s{sWave}, 4")
    A(f"s_cbranch_scc1 {L('helper')}")

    alts = [a.split(":") for a in alt.split(",") if a]
    for i, (lo, hi, kp, vp) in enumerate(alts):
        A(f"s_sub_u32 s55, s2, {lo}")
        A(f"s_cmp_lt_u32 s55, {int(hi) - int(lo)}")
        A(f"s_cbranch_scc1 L_stream{i}")
    i_s0 = len(out)
    vKoff, vVoff = 2, 3
    vM, vLs, vS = 8, 9, 10
    vT = [11, 12, 13, 14, 15]
    D = 16
    O = 20
    vP = [24, 25]
    vS2 = 26
    vLds = 28
    vMg, vRl = 29, 30
    vStg = 31
    BQ = 32
    RING = 64
    TMP = RING + RG * 16
    sK, sV = 44, 48
    sKpos, sVpos, sCnt = 52, 53, 54
    STEP = 16384

    A(f"v_and_b32 v{vKoff}, 3, v{vLane}")
    A(f"v_lshlrev_b32 v{vKoff}, 4, v{vKoff}")
    A(f"v_bfe_u32 v10, v{vLane}, 2, 2")
    A(f"v_lshl_add_u32 v{vKoff}, v10, 8, v{vKoff}")
    A(f"v_lshrrev_b32 v10, 4, v{vLane}")
    A(f"v_lshl_add_u32 v{vKoff}, v10, 6, v{vKoff}")
    A(f"v_lshlrev_b32 v{vVoff}, 4, v{vLane}")
    A("s_lshl_b32 s55, s2, 21")
    A(f"s_lshl_b32 s{sKpos}, s{sWave}, 12")
    A(f"s_mov_b32 s{sVpos}, s{sKpos}")
    A("s_waitcnt lgkmcnt(0)")
    if fst: stamp()
    A(f"s_add_u32 s{sK}, s18, s55"); A(f"s_addc_u32 s{sK+1}, s19, 0")
    A(f"s_mov_b32 s{sK+2}, 0x200000"); A(f"s_mov_b32 s{sK+3}, 0x20000")
    A(f"s_add_u32 s{sV}, s20, s55"); A(f"s_addc_u32 s{sV+1}, s21, 0")
    A(f"s_mov_b32 s{sV+2}, 0x200000"); A(f"s_mov_b32 s{sV+3}, 0x20000")

    st = {"last": -1, "known": -1, "lab": 0, "dyn": False}
    sMode = 57
    vProg, vPrA, vFlA, vFlag = 48, 49, 50, 51
    def wait_vm(n):
        A(f"s_waitcnt vmcnt({n})")
        st["known"] = max(st["known"], st["last"] - n)
    def need(l):
        assert l <= st["last"]
        if st["known"] < l: wait_vm(st["last"] - l)
    def issue(cap=None):
        l = st["last"] + 1
        if l >= 1024: return
        if cap == "dyn":
            hi, mid, lo = (x[l % len(x)] for x in lv)
            st["lab"] += 1
            lab = f"L_th{st['lab']}@LS@"
            if st["known"] < l - hi: wait_vm(hi - 1)
            if mid < hi:
                A(f"s_cmp_eq_u32 s{sMode}, 0"); A(f"s_cbranch_scc1 {lab}")
                A(f"s_waitcnt vmcnt({mid-1})")
            if lo < mid:
                A(f"s_cmp_lg_u32 s{sMode}, 2"); A(f"s_cbranch_scc1 {lab}")
                A(f"s_waitcnt vmcnt({lo-1})")
            LBL(lab)
        elif cap is not None and st["known"] < l - cap: wait_vm(cap - 1)
        kind = "k" if l < 512 else "v"
        srd, pos, vo = (sK, sKpos, vKoff) if kind == "k" else (sV, sVpos, vVoff)
        t = l % 4
        pol = "@KP@" if kind == "k" else "@VP@"
        if R <= l < R + E:
            if t == 0:
                A(f"s_add_u32 m0, s{sStg}, {(l - R) * 1024}")
                nop(0)
            A(f"buffer_load_dwordx4 v{vo}, s[{srd}:{srd+3}], s{pos} offen offset:{t*1024} {pol} lds")
        else:
            assert (l - R) in done or l < R, l
            r = RING + (l % R) * 4
            A(f"buffer_load_dwordx4 v[{r}:{r+3}], v{vo}, s[{srd}:{srd+3}], s{pos} offen offset:{t*1024} {pol}")
        if t == 3: A(f"s_add_u32 s{pos}, s{pos}, {STEP}")
        st["last"] = l
    done = set()
    sStg = 56
    A(f"s_mul_i32 s{sStg}, s{sWave}, {E*1024}")
    A(f"s_add_u32 s{sStg}, s{sStg}, {L_STG}")

    if sprio: A(f"s_setprio {sprio}")
    for l in range(R + E):
        issue(PDL)
        if pst and l % 8 == 7: stamp()
        if fst and (l == 0 or PDL - 1 <= l < PDL + 8): stamp()
    A(f"v_mov_b32 v{vM}, 0xff7fffff")
    A(f"v_mov_b32 v{vLs}, 0")
    A(f"v_mov_b32 v{vS}, 0")
    A(f"s_lshl_b32 s55, s{sWave}, 13")
    A(f"s_add_u32 s55, s55, {L_SC}")
    A(f"v_lshl_add_u32 v{vLds}, v{vLane}, 2, s55")
    for r in range(4): A(f"v_mov_b32 v{O+r}, 0")
    A(f"v_add_u32 v{vStg}, s{sStg}, v{vVoff}")
    A(f"v_lshrrev_b32 v{vT[0]}, 2, v{vLane}")
    A(f"v_lshlrev_b32 v{vT[0]}, 5, v{vT[0]}")
    A(f"v_and_b32 v{vT[1]}, 3, v{vLane}")
    if ctl:
        A(f"s_lshl_b32 s55, s{sWave}, 2")
        A(f"s_add_u32 s55, s55, {L_PR}")
        A(f"v_mov_b32 v{vPrA}, s55")
        A(f"v_mov_b32 v{vFlA}, {L_FL}")
        A(f"v_mov_b32 v{vProg}, {(2 if E else 1) * RG}")
        A(f"v_mov_b32 v{vFlag}, 1")
        A(f"s_mov_b32 s{sMode}, 1")
        A(f"ds_write_b32 v{vPrA}, v{vProg}")
        A(f"ds_write_b32 v{vFlA}, v{vFlag}")
        A("s_waitcnt lgkmcnt(0)")
    stamp()
    A("s_barrier")
    stamp()
    for w in range(4):
        for hlf in range(2):
            r = TMP + w * 8 + hlf * 4
            A(f"ds_read_b128 v[{r}:{r+3}], v{vT[0]} offset:{L_QP + w*512 + hlf*16}")
    A("s_waitcnt lgkmcnt(0)")
    for e in range(8):
        A(f"v_add_f32 v{TMP+e}, v{TMP+e}, v{TMP+8+e}")
        A(f"v_add_f32 v{TMP+16+e}, v{TMP+16+e}, v{TMP+24+e}")
    for e in range(8):
        A(f"v_add_f32 v{TMP+e}, v{TMP+e}, v{TMP+16+e}")
    for m in range(4):
        A(f"v_cvt_pk_bf16_f32 v{TMP+8+m}, v{TMP+2*m}, v{TMP+2*m+1}")
    for t in range(4):
        A(f"v_cmp_eq_u32 vcc, {t}, v{vT[1]}")
        nop(1)
        for m in range(4):
            A(f"v_cndmask_b32 v{BQ+4*t+m}, 0, v{TMP+8+m}, vcc")
    nop(1)

    cnt = {"c": 0}
    plan = {}
    capo = {"w": 0}
    def capf(): return capo["w"] or ("dyn" if st["dyn"] else pat[(st["last"] + 1) % len(pat)])
    def group():
        if not st["dyn"]: return
        A("s_waitcnt lgkmcnt(0)")
        A(f"v_readfirstlane_b32 s{sMode}, v{vFlag}")
        A(f"v_add_u32 v{vProg}, 1, v{vProg}")
        A(f"ds_write_b32 v{vPrA}, v{vProg}")
        A(f"ds_read_b32 v{vFlag}, v{vFlA}")
    def consume(l, mfma):
        n_iss = plan.get(cnt["c"], 1)
        pre = (not ctl and RD == pat[0] and len(pat) == 1 and (st["last"] + 1 - R) in done and st["last"] + 1 >= R + E)
        need(l)
        if pre:
            for _ in range(n_iss): issue(capf())
        A(mfma)
        done.add(l)
        if not pre:
            for _ in range(n_iss): issue(capf())
        cnt["c"] += 1
    def kstep(j):
        n = j % RG
        u = j % 4
        for t in range(4):
            l = 4 * j + t
            r = RING + (l % R) * 4
            c = "0" if t == 0 else f"v[{D}:{D+3}]"
            consume(l, f"v_mfma_f32_16x16x32_bf16 v[{D}:{D+3}], v[{r}:{r+3}], v[{BQ+4*t}:{BQ+4*t+3}], {c}")
            if t == 0: group()
        if 4 * j < E:
            need(R + 4 * j + 3)
            for t in range(4):
                l = 4 * j + t
                r = RING + l * 4
                A(f"ds_read_b128 v[{r}:{r+3}], v{vStg} offset:{l*1024}")
            nop(3)
        else:
            nop(7)
        a, b, c = u ^ 1, u ^ 2, u ^ 3
        A(f"v_add_f32_dpp v{vT[0]}, v{D+b}, v{D+u} row_ror:8 row_mask:0xf bank_mask:0xf")
        A(f"v_add_f32_dpp v{vT[1]}, v{D+c}, v{D+a} row_ror:8 row_mask:0xf bank_mask:0xf")
        nop(1)
        A(f"v_add_f32_dpp v{vS}, v{vT[1]}, v{vT[0]} row_ror:{4 if u & 1 else 12} row_mask:0xf bank_mask:{hex(1 << u)}")
        if u == 3:
            rbf(vT[2], vS)
            A(f"v_mul_f32 v{vT[2]}, {SCALE}, v{vT[2]}")
            rbf(vT[2], vT[2])
            A(f"ds_write_b32 v{vLds}, v{vT[2]} offset:{(n//4)*256}")
            A(f"v_max_f32 v{vT[3]}, v{vM}, v{vT[2]}")
            A(f"v_sub_f32 v{vT[0]}, v{vM}, v{vT[3]}")
            A(f"v_sub_f32 v{vT[1]}, v{vT[2]}, v{vT[3]}")
            A(f"v_mul_f32 v{vT[0]}, {LOG2E}, v{vT[0]}")
            A(f"v_mul_f32 v{vT[1]}, {LOG2E}, v{vT[1]}")
            A(f"v_exp_f32 v{vT[0]}, v{vT[0]}")
            A(f"v_exp_f32 v{vT[1]}, v{vT[1]}")
            A(f"v_mov_b32 v{vM}, v{vT[3]}")
            A(f"v_fma_f32 v{vLs}, v{vLs}, v{vT[0]}, v{vT[1]}")
    def spread(c0, n_consume, n_issue, first):
        for c in range(c0, c0 + n_consume): plan[c] = 0
        first = min(first, n_issue)
        for k in range(first): plan[c0 + k] += 1
        rest = n_issue - first
        for k in range(rest):
            c = c0 + first + ((k + 1) * (n_consume - first)) // rest - 1
            plan[c] += 1
    def rel(): return (st["last"] - cnt["c"], st["known"] - cnt["c"])
    def skip_iters(n):
        st["last"] += R * n; st["known"] += R * n
        for l in range(cnt["c"], cnt["c"] + R * n): done.add(l)
        cnt["c"] += R * n

    NIT = 128 // RG
    NP = 2 if E else 1
    spread(0, NP * R, NP * R - 1 + RD - st["last"], max(pat))
    order = list(range(RG))
    if E: order = order[E // 4:] + order[:E // 4]
    for j in order: kstep(j)
    A(f"v_add_u32 v{vLds}, {RG*64}, v{vLds}")
    stamp()
    if E:
        A("s_waitcnt lgkmcnt(0)")
        for j in range(RG, 2 * RG): kstep(j)
        A(f"v_add_u32 v{vLds}, {RG*64}, v{vLds}")
        stamp()
    assert st["last"] == NP * R - 1 + RD
    if ctl:
        st["dyn"] = True
        pat = lv[0]
    st["known"] = min(st["known"], st["last"] - pat[st["last"] % len(pat)])
    r0 = rel()
    A(f"s_mov_b32 s{sCnt}, {NIT-1-NP}")
    LBL(L("kloop"))
    for j in range(NP * RG, (NP + 1) * RG): kstep(j)
    A(f"v_add_u32 v{vLds}, {RG*64}, v{vLds}")
    stamp()
    A(f"s_sub_u32 s{sCnt}, s{sCnt}, 1")
    A(f"s_cmp_lg_u32 s{sCnt}, 0")
    A(f"s_cbranch_scc1 {L('kloop')}")
    assert rel() == r0, (rel(), r0)
    skip_iters(NIT - 2 - NP)
    for j in range(128 - RG, 128): kstep(j)
    assert st["last"] == 511 + RD
    stamp()
    for _ in range(MIDA): issue()
    A(f"v_subrev_u32 v{vLds}, {8192 - RG*64}, v{vLds}")
    A(f"v_mov_b32 v{vT[0]}, v{vM}")
    wave_reduce(vT[0], "max", vT[2])
    A(f"v_sub_f32 v{vT[0]}, v{vM}, v{vT[2]}")
    A(f"v_mul_f32 v{vT[0]}, {LOG2E}, v{vT[0]}")
    A(f"v_exp_f32 v{vT[0]}, v{vT[0]}")
    nop(0)
    A(f"v_mul_f32 v{vT[0]}, v{vLs}, v{vT[0]}")
    for _ in range(MIDB): issue()
    wave_reduce(vT[0], "add", vT[3])
    A(f"v_mov_b32 v{D}, v{vT[2]}")
    A(f"v_mov_b32 v{D+1}, v{vT[3]}")
    A(f"s_lshl_b32 s55, s{sWave}, 3")
    A(f"v_mov_b32 v{vT[0]}, s55")
    A(f"v_mov_b32 v{vT[1]}, 0")
    A("s_mov_b64 exec, 1")
    A(f"ds_write_b64 v{vT[0]}, v[{D}:{D+1}] offset:{L_ST}")
    A("s_mov_b64 exec, -1")
    A(f"ds_read2st64_b32 v[{vS2}:{vS2+1}], v{vLds} offset0:0 offset1:1")
    for _ in range(MIDC): issue()
    A("s_waitcnt lgkmcnt(0)")
    stamp()
    A("s_barrier")
    stamp()
    A(f"ds_read_b128 v[{TMP}:{TMP+3}], v{vT[1]} offset:{L_ST}")
    A(f"ds_read_b128 v[{TMP+4}:{TMP+7}], v{vT[1]} offset:{L_ST+16}")
    A("s_waitcnt lgkmcnt(0)")
    A(f"v_max3_f32 v{vMg}, v{TMP}, v{TMP+2}, v{TMP+4}")
    A(f"v_max_f32 v{vMg}, v{vMg}, v{TMP+6}")
    for w in range(4):
        A(f"v_sub_f32 v{TMP+2*w}, v{TMP+2*w}, v{vMg}")
        A(f"v_mul_f32 v{TMP+2*w}, {LOG2E}, v{TMP+2*w}")
        A(f"v_exp_f32 v{TMP+2*w}, v{TMP+2*w}")
    nop(0)
    A(f"v_mul_f32 v{vT[0]}, v{TMP}, v{TMP+1}")
    for w in range(1, 4):
        A(f"v_fma_f32 v{vT[0]}, v{TMP+2*w}, v{TMP+2*w+1}, v{vT[0]}")
    A(f"v_rcp_f32 v{vRl}, v{vT[0]}")
    nop(0)
    A(f"v_fma_f32 v{vT[1]}, -v{vT[0]}, v{vRl}, 1.0")
    A(f"v_fma_f32 v{vRl}, v{vT[1]}, v{vRl}, v{vRl}")

    assert RG == 8, "V loop is written for 2 P registers per iteration"
    def vhead():
        stamp()
        A("s_waitcnt lgkmcnt(0)")
        for i in range(2): A(f"v_sub_f32 v{vP[i]}, v{vS2+i}, v{vMg}")
        for i in range(2): A(f"v_mul_f32 v{vP[i]}, {LOG2E}, v{vP[i]}")
        for i in range(2): A(f"v_exp_f32 v{vP[i]}, v{vP[i]}")
        A(f"v_add_u32 v{vLds}, 512, v{vLds}")
        for i in range(2): A(f"v_mul_f32 v{vP[i]}, v{vP[i]}, v{vRl}")
        for i in range(2): A(f"v_cvt_pk_bf16_f32 v{vP[i]}, v{vP[i]}, v{vP[i]}")
        A(f"ds_read2st64_b32 v[{vS2}:{vS2+1}], v{vLds} offset0:0 offset1:1")
        nop(0)
    def vstep(j):
        n = j % RG
        u = j % 4
        p = vP[n // 4]
        for t in range(4):
            for m in range(4):
                A(f"v_and_b32_dpp v{BQ+4*t+m}, v{p}, v{vMask[m]} row_newbcast:{u*4+t} row_mask:0xf bank_mask:0xf")
        for t in range(4):
            l = 4 * j + t
            r = RING + (l % R) * 4
            consume(l, f"v_mfma_f32_16x16x32_bf16 v[{O}:{O+3}], v[{BQ+4*t}:{BQ+4*t+3}], v[{r}:{r+3}], v[{O}:{O+3}]")
            if t == 0: group()
    spread(512, R, 512 + R - 1 + RD - st["last"], 2)
    vhead()
    for j in range(128, 128 + RG): vstep(j)
    assert st["last"] == 512 + R - 1 + RD
    st["known"] = min(st["known"], st["last"] - pat[st["last"] % len(pat)])
    r0 = rel()
    A(f"s_mov_b32 s{sCnt}, {NIT-1-NE}")
    LBL(L("vloop"))
    vhead()
    for j in range(128 + RG, 128 + 2 * RG): vstep(j)
    A(f"s_sub_u32 s{sCnt}, s{sCnt}, 1")
    A(f"s_cmp_lg_u32 s{sCnt}, 0")
    A(f"s_cbranch_scc1 {L('vloop')}")
    assert rel() == r0, (rel(), r0)
    skip_iters(NIT - 2 - NE)
    if WE:
        capo["w"] = WE
        for k in range(WE + 2 - RD): plan[cnt["c"] + 2 * k] = 2
    for it in range(NE):
        vhead()
        for j in range(256 - (NE - it) * RG, 256 - (NE - it - 1) * RG): vstep(j)
    assert st["last"] == 1023
    A(f"v_and_b32 v{vT[0]}, 15, v{vLane}")
    A(f"v_lshlrev_b32 v{vT[0]}, 5, v{vT[0]}")
    A(f"v_lshrrev_b32 v{vT[1]}, 4, v{vLane}")
    A(f"v_lshl_add_u32 v{vT[0]}, v{vT[1]}, 4, v{vT[0]}")
    A(f"s_lshl_b32 s55, s{sWave}, 9")
    A(f"v_add_u32 v{vT[0]}, s55, v{vT[0]}")
    A("s_mov_b32 exec_hi, 0")
    nop(2)
    A(f"ds_write_b128 v{vT[0]}, v[{O}:{O+3}] offset:{L_OP}")
    A("s_waitcnt lgkmcnt(0)")
    stamp()
    A("s_barrier")
    stamp()
    stamp_flush()
    A("s_endpgm")
    body = out[i_s0:]
    del out[i_s0:]
    fix = lambda p: p.replace("+", " ").replace("def", "")
    out.extend(x.replace("@KP@", kpol).replace("@VP@", vpol).replace("@LS@", "") for x in body)
    for i, (lo, hi, kp, vp) in enumerate(alts):
        LBL(f"L_stream{i}")
        out.extend(x.replace("@KP@", fix(kp)).replace("@VP@", fix(vp)).replace("L_kloop", f"L_kloop{i}").replace("L_vloop", f"L_vloop{i}").replace("@LS@", f"_{i}") for x in body)

    LBL(L("helper"))
    sHW = 44
    sX, sW, sWS, sDbg, sOut = 48, 52, 64, 68, 72
    sOff = 45
    vG, vC = 2, 3
    vX4 = 8
    vXs = 12
    vXf = 16
    vMu, vMb, vDen, vRd = 24, 25, 26, 27
    vA = 28
    vAcc = 36
    hT = [40, 41, 42, 43, 44, 45, 46, 47]
    vWoff = 48
    vPO = 49
    vH = 52
    vOld = 53
    vKeep, vGo = 14, 15
    sEH = 84 if not stamps else 93
    vTog = 8
    vGres = 56
    vGc0, vGc1 = 57, 58
    vFin = 60
    vXo = 50
    W = 64
    PW = 192
    A("s_setprio 3")
    A(f"s_sub_u32 s{sHW}, s{sWave}, 4")
    A(f"v_lshrrev_b32 v{vG}, 4, v{vLane}")
    A(f"v_and_b32 v{vC}, 15, v{vLane}")
    A(f"v_lshlrev_b32 v{hT[0]}, 4, v{vLane}")
    A(f"s_lshl_b32 s56, s{sB}, 2")
    if not rot: A("s_mov_b32 s56, 0")
    A(f"v_add_u32 v{hT[1]}, s56, v{vC}")
    A(f"v_add_u32 v{hT[2]}, 16, v{hT[1]}")
    A(f"v_and_b32 v{hT[1]}, 31, v{hT[1]}")
    A(f"v_and_b32 v{hT[2]}, 31, v{hT[2]}")
    A(f"v_lshlrev_b32 v{hT[1]}, 3, v{hT[1]}")
    A(f"v_lshlrev_b32 v{hT[2]}, 3, v{hT[2]}")
    A(f"v_lshl_add_u32 v{hT[1]}, v{vG}, 1, v{hT[1]}")
    A(f"v_lshl_add_u32 v{hT[2]}, v{vG}, 1, v{hT[2]}")
    A(f"s_lshl_b32 s{sOff}, s56, 15")
    A(f"v_lshlrev_b32 v{vWoff}, 4, v{vC}")
    A(f"v_lshl_add_u32 v{vWoff}, v{vG}, 13, v{vWoff}")
    A(f"v_lshlrev_b32 v{vPO}, 5, v{vC}")
    A(f"v_lshl_add_u32 v{vPO}, v{vG}, 4, v{vPO}")
    A(f"s_lshl_b32 s46, s{sB}, 10")
    A(f"s_lshl_b32 s47, s{sHW}, 8")
    A(f"s_lshl_b32 s57, s{sHW}, 20")
    A(f"s_lshl_b32 s56, s{sH}, 8")
    A(f"s_add_u32 s57, s57, s56")
    A("s_waitcnt lgkmcnt(0)")
    A(f"s_add_u32 s{sX}, s16, s46"); A(f"s_addc_u32 s{sX+1}, s17, 0")
    A(f"s_mov_b32 s{sX+2}, 1024"); A(f"s_mov_b32 s{sX+3}, 0x20000")
    A(f"s_add_u32 s{sW}, s22, s57"); A(f"s_addc_u32 s{sW+1}, s23, 0")
    A(f"s_sub_u32 s{sW+2}, 0x100000, s56"); A(f"s_mov_b32 s{sW+3}, 0x20000")
    if nowq == 1: A(f"s_mov_b32 s{sW+2}, 0")
    A(f"buffer_load_dwordx4 v[{vX4}:{vX4+3}], v{hT[0]}, s[{sX}:{sX+3}], 0 offen")
    A(f"buffer_load_ushort v{vXs}, v{hT[1]}, s[{sX}:{sX+3}], s47 offen")
    A(f"buffer_load_ushort v{vXs+1}, v{hT[2]}, s[{sX}:{sX+3}], s47 offen")
    hs = {"last": -1}
    def wq_issue(i):
        assert i == hs["last"] + 1
        if nowq != 2: A(f"buffer_load_dwordx4 v[{W+4*i}:{W+4*i+3}], v{vWoff}, s[{sW}:{sW+3}], s{sOff} offen {wpol}")
        if i < 31:
            A(f"s_add_u32 s{sOff}, s{sOff}, 32768")
            A(f"s_and_b32 s{sOff}, s{sOff}, 0xfffff")
        hs["last"] = i
    for i in range(HW0): wq_issue(i)
    A(f"s_lshl_b32 s56, s{sH}, 5")
    A(f"s_lshl_b32 s57, s{sHW}, 3")
    A("s_add_u32 s56, s56, s57")
    A(f"s_add_u32 s58, s{sX}, s56"); A(f"s_addc_u32 s59, s{sX+1}, 0")
    A("s_load_dwordx2 s[76:77], s[58:59], 0")
    A("s_load_dword s78, s[34:35], 0")


    cPG, cDf, cSlot, cL4, cGl, cGo, c128, cP, cS, cG, cT, cT2, cZ, cFA = range(236, 250)
    cQ = 232
    sCX, sCG, sPrev, sGn, sCur, sD, sSx, sE, sMd, sDue = 4, 5, 6, 7, 8, 9, 10, 11, 12, 13
    sRd = 26
    def ctl_setup():
        A(f"s_getreg_b32 s{sCX}, hwreg(HW_REG_XCC_ID)")
        A(f"s_and_b32 s{sCX}, s{sCX}, 15")
        A(f"s_mul_i32 s{sCX}, s{sCX}, 4352")
        A(f"s_add_u32 s{sCX}, s{sCX}, {WS_CX}")
        A(f"s_mov_b32 s{sCG}, {WS_CG}")
        A("s_lshr_b32 s56, s2, 3"); A("s_lshl_b32 s56, s56, 2")
        A(f"v_mov_b32 v{cSlot}, s56")
        A(f"v_lshlrev_b32 v{cL4}, 2, v{vLane}")
        A(f"v_and_b32 v{cGl}, 7, v{vLane}")
        A(f"v_mul_u32_u24 v{cGl}, 4352, v{cGl}")
        A("s_and_b32 s56, s2, 7"); A("s_mul_i32 s56, s56, 4352")
        A(f"v_mov_b32 v{cGo}, s56")
        A(f"v_mov_b32 v{c128}, 128")
        for r in (cPG, cDf, cS, cG, cZ): A(f"v_mov_b32 v{r}, 0")
        A(f"v_mov_b32 v{cFA}, {L_FL}")
        A(f"s_mov_b32 s{sGn}, 0")
    def ctl_init():
        A(f"s_cmp_lg_u32 s{sHW}, {CK}")
        A(f"s_cbranch_scc1 {L('cinit_done')}")
        A("s_mov_b64 exec, 1")
        A(f"buffer_store_dword v{cZ}, v{cSlot}, s[{sWS}:{sWS+3}], s{sCX} offen")
        A("s_cmp_ge_u32 s2, 8")
        A(f"s_cbranch_scc1 {L('cinit_done')}")
        A(f"buffer_store_dword v{cZ}, v{c128}, s[{sWS}:{sWS+3}], s{sCX} offen")
        A(f"buffer_store_dword v{cZ}, v{cGo}, s[{sWS}:{sWS+3}], s{sCG} offen sc1")
        LBL(L("cinit_done"))
        A("s_mov_b64 exec, -1")
    def ctl_loop(tag, wave, lim, adv):
        A(f"s_cmp_lg_u32 s{sHW}, {wave}")
        A(f"s_cbranch_scc1 {L('cskip' + tag)}")
        A(f"v_lshlrev_b32 v{cT}, 3, v{vLane}")
        if tag == "v":
            A("s_mov_b64 exec, 0xff")
            A(f"ds_read_b64 v[{cPG}:{cDf}], v{cT} offset:{L_HO}")
        A("s_mov_b64 exec, 1")
        A(f"ds_read_b128 v[{cQ}:{cQ+3}], v{cZ} offset:{L_PR}")
        A("s_waitcnt lgkmcnt(0)")
        A(f"v_add_u32 v{cQ}, v{cQ}, v{cQ+1}"); A(f"v_add3_u32 v{cP}, v{cQ}, v{cQ+2}, v{cQ+3}")
        nop(1)
        A(f"v_readfirstlane_b32 s{sPrev}, v{cP}")
        LBL(L("cloop" + tag))
        A(f"s_sleep {slp}")
        A("s_mov_b64 exec, 1")
        A(f"ds_read_b128 v[{cQ}:{cQ+3}], v{cZ} offset:{L_PR}")
        A("s_waitcnt lgkmcnt(0)")
        A(f"v_add_u32 v{cQ}, v{cQ}, v{cQ+1}"); A(f"v_add3_u32 v{cP}, v{cQ}, v{cQ+2}, v{cQ+3}")
        nop(1)
        A(f"v_readfirstlane_b32 s{sCur}, v{cP}")
        nop(0)
        A(f"s_cmp_ge_u32 s{sCur}, {lim}")
        A(f"s_cbranch_scc1 {L('cexit' + tag)}")
        A(f"buffer_store_dword v{cP}, v{cSlot}, s[{sWS}:{sWS+3}], s{sCX} offen")
        A("s_mov_b32 exec_lo, -1"); A("s_mov_b32 exec_hi, 1")
        A(f"buffer_load_dword v{cS}, v{cL4}, s[{sWS}:{sWS+3}], s{sCX} offen sc1")
        A(f"s_add_u32 s{sGn}, s{sGn}, 1"); A(f"s_cmp_ge_u32 s{sGn}, {gn}"); A(f"s_cselect_b32 s{sGn}, 0, s{sGn}")
        A("s_cmp_ge_u32 s2, 8")
        A(f"s_cbranch_scc1 {L('cn1' + tag)}")
        A("s_mov_b64 exec, 0xff")
        A(f"buffer_load_dword v{cG}, v{cGl}, s[{sWS}:{sWS+3}], s{sCG} offen sc1")
        LBL(L("cn1" + tag))
        A("s_mov_b64 exec, -1")
        A(f"s_sub_i32 s56, s{sCur}, {clamp}"); A(f"s_add_i32 s57, s{sCur}, {clamp}")
        A(f"v_mov_b32 v{cT}, s57")
        A("s_waitcnt vmcnt(0)")
        A(f"v_readlane_b32 s{sD}, v{cS}, 32")
        A(f"v_med3_i32 v{cS}, v{cS}, s56, v{cT}")
        for r in (8, 4, 2, 1):
            nop(1); A(f"v_add_u32_dpp v{cS}, v{cS}, v{cS} row_ror:{r} row_mask:0xf bank_mask:0xf")
        nop(0)
        A(f"v_readlane_b32 s{sSx}, v{cS}, 0"); A(f"v_readlane_b32 s56, v{cS}, 16")
        nop(3)
        A(f"s_add_u32 s{sSx}, s{sSx}, s56")
        A("s_cmp_ge_u32 s2, 8")
        A(f"s_cbranch_scc1 {L('cn2' + tag)}")
        A(f"v_cmp_ne_u32 vcc, v{cG}, v{cPG}")
        A(f"v_sub_u32 v{cT}, s{sSx}, v{cG}")
        A(f"v_subrev_u32 v{cT}, {gbias}, v{cT}")
        A(f"v_cndmask_b32 v{cDf}, v{cDf}, v{cT}, vcc")
        A(f"v_mov_b32 v{cPG}, v{cG}")
        A(f"v_writelane_b32 v{cDf}, 0, s2")
        nop(0)
        for i in range(8): A(f"v_readlane_b32 s{sRd+i}, v{cDf}, {i}")
        nop(3)
        for i in range(1, 8): A(f"s_add_u32 s{sRd}, s{sRd}, s{sRd+i}")
        A(f"s_ashr_i32 s{sD}, s{sRd}, 3")
        A("s_mov_b64 exec, 1")
        A(f"v_mov_b32 v{cT}, s{sSx}"); A(f"v_mov_b32 v{cT2}, s{sD}")
        A(f"buffer_store_dword v{cT2}, v{c128}, s[{sWS}:{sWS+3}], s{sCX} offen")
        A(f"s_cmp_lg_u32 s{sGn}, 0")
        A(f"s_cbranch_scc1 {L('cn2' + tag)}")
        A(f"buffer_store_dword v{cT}, v{cGo}, s[{sWS}:{sWS+3}], s{sCG} offen sc1")
        LBL(L("cn2" + tag))
        A(f"s_add_u32 s{sE}, s{sCur}, s{sPrev}"); A(f"s_lshl_b32 s{sE}, s{sE}, 4")
        A(f"s_sub_i32 s{sE}, s{sE}, s{sSx}")
        A(f"s_add_i32 s{sE}, s{sE}, s{sD}")
        A(f"s_mov_b32 s{sPrev}, s{sCur}")
        A(f"s_mov_b32 s{sMd}, 1")
        A(f"s_cmp_gt_i32 s{sE}, {bias+theta}"); A(f"s_cselect_b32 s{sMd}, 2, s{sMd}")
        A(f"s_cmp_lt_i32 s{sE}, {bias-theta}"); A(f"s_cselect_b32 s{sMd}, 0, s{sMd}")
        A("s_mov_b64 exec, 1")
        A(f"v_mov_b32 v{cT}, s{sMd}")
        A(f"ds_write_b32 v{cFA}, v{cT}")
        if stamps:
            A("s_add_u32 s14, s14, 1")
            A(f"s_cmp_eq_u32 s{sMd}, 0"); A("s_addc_u32 s15, s15, 0")
            A(f"s_cmp_eq_u32 s{sMd}, 2"); A("s_addc_u32 s18, s18, 0")
        A(f"s_branch {L('cloop' + tag)}")
        LBL(L("cexit" + tag))
        A(f"v_add_u32 v{cP}, {adv}, v{cP}")
        A(f"buffer_store_dword v{cP}, v{cSlot}, s[{sWS}:{sWS+3}], s{sCX} offen")
        if tag == "k":
            A("s_mov_b64 exec, 0xff")
            A(f"v_lshlrev_b32 v{cT}, 3, v{vLane}")
            A(f"ds_write_b64 v{cT}, v[{cPG}:{cDf}] offset:{L_HO}")
        A("s_mov_b64 exec, -1")
        if stamps:
            A(f"v_writelane_b32 v{vSt}, s14, 56"); A(f"v_writelane_b32 v{vSt}, s15, 57"); A(f"v_writelane_b32 v{vSt}, s18, 58")
        LBL(L("cskip" + tag))

    def unpack8(src, dst):
        for i in range(4):
            A(f"v_lshlrev_b32 v{dst+2*i}, 16, v{src+i}")
            A(f"v_and_b32 v{dst+2*i+1}, 0xffff0000, v{src+i}")
    def ln_stats(xf, mb, den, rd):
        t0, t1, t2 = hT[0], hT[1], hT[2]
        A(f"v_add_f32 v{t0}, v{xf}, v{xf+1}")
        A(f"v_add_f32 v{t1}, v{xf+2}, v{xf+3}")
        A(f"v_add_f32 v{t2}, v{xf+4}, v{xf+5}")
        A(f"v_add_f32 v{t0}, v{t0}, v{t1}")
        A(f"v_add_f32 v{t1}, v{xf+6}, v{xf+7}")
        A(f"v_add_f32 v{t1}, v{t1}, v{t2}")
        A(f"v_add_f32 v{t0}, v{t0}, v{t1}")
        wave_reduce(t0, "add", vMu)
        A(f"v_mul_f32 v{vMu}, {f32(1/512)}, v{vMu}")
        A(f"v_sub_f32 v{t1}, v{xf}, v{vMu}")
        A(f"v_mul_f32 v{t0}, v{t1}, v{t1}")
        for i in range(1, 8):
            A(f"v_sub_f32 v{t1}, v{xf+i}, v{vMu}")
            A(f"v_fma_f32 v{t0}, v{t1}, v{t1}, v{t0}")
        wave_reduce(t0, "add", den)
        A(f"v_mul_f32 v{den}, {f32(1/512)}, v{den}")
        rbf(mb, vMu)
        rbf(den, den)
        A(f"v_add_f32 v{den}, {f32(1e-5)}, v{den}")
        rbf(den, den)
        A(f"v_sqrt_f32 v{den}, v{den}")
        nop(0)
        rbf(den, den)
        A(f"v_rcp_f32 v{rd}, v{den}")
        nop(0)
    def ln_apply(v, mb, den, rd, tmp):
        A(f"v_sub_f32 v{v}, v{v}, v{mb}")
        rbf(v, v)
        A(f"v_mul_f32 v{tmp}, v{v}, v{rd}")
        A(f"v_fma_f32 v{v}, -v{tmp}, v{den}, v{v}")
        A(f"v_fma_f32 v{v}, v{v}, v{rd}, v{tmp}")

    stamp()
    A(f"s_waitcnt vmcnt({HW0+2})")
    stamp()
    unpack8(vX4, vXf)
    ln_stats(vXf, vMb, vDen, vRd)
    A(f"s_waitcnt vmcnt({HW0})")
    for k in range(2):
        A(f"v_lshlrev_b32 v{vXs+k}, 16, v{vXs+k}")
        ln_apply(vXs + k, vMb, vDen, vRd, hT[0])
        A(f"v_cvt_pk_bf16_f32 v{vXs+k}, v{vXs+k}, v{vXs+k}")
    nop(1)
    def diag_matvec(src, waits):
        def mkA(i):
            for m in range(4):
                A(f"v_and_b32_dpp v{vA+4*(i&1)+m}, v{src+(i>>4)}, v{vMask[m]} row_newbcast:{i&15} row_mask:0xf bank_mask:0xf")
        mkA(0)
        for i in range(32):
            if i < 31: mkA(i + 1)
            else: nop(1)
            if waits:
                A(f"s_waitcnt vmcnt({hs['last']-i})")
                if i + HT > hs["last"] and i + HT < 32: wq_issue(i + HT)
            c = "0" if i == 0 else f"v[{vAcc}:{vAcc+3}]"
            a = vA + 4 * (i & 1)
            A(f"v_mfma_f32_16x16x32_bf16 v[{vAcc}:{vAcc+3}], v[{a}:{a+3}], v[{W+4*i}:{W+4*i+3}], {c}")
    stamp()
    diag_matvec(vXs, True)
    stamp()
    A(f"s_lshl_b32 s56, s{sHW}, 9")
    A(f"v_add_u32 v{hT[0]}, s56, v{vPO}")
    A("s_mov_b32 exec_hi, 0")
    nop(5)
    A(f"ds_write_b128 v{hT[0]}, v[{vAcc}:{vAcc+3}] offset:{L_QP}")
    A("s_mov_b32 exec_hi, -1")
    A("s_waitcnt lgkmcnt(0)")
    A("s_barrier")
    stamp()
    A(f"s_mov_b32 s{sWS}, s40"); A(f"s_mov_b32 s{sWS+1}, s41")
    A(f"s_mov_b32 s{sWS+2}, {WS_BYTES}"); A(f"s_mov_b32 s{sWS+3}, 0x20000")
    A(f"s_mov_b32 s{sDbg}, s38"); A(f"s_mov_b32 s{sDbg+1}, s39")
    A(f"s_mov_b32 s{sDbg+2}, 256"); A(f"s_mov_b32 s{sDbg+3}, 0x20000")
    A(f"s_mov_b32 s{sOut}, s36"); A(f"s_mov_b32 s{sOut+1}, s37")
    A(f"s_mov_b32 s{sOut+2}, 8192"); A(f"s_mov_b32 s{sOut+3}, 0x20000")
    A(f"s_lshl_b32 s79, s{sB}, 2")
    A(f"s_add_u32 s79, s79, s{sHW}")
    A("s_lshl_b32 s79, s79, 14")
    A(f"s_lshl_b32 s80, s{sH}, 9")
    A("s_add_u32 s80, s80, s79")
    A(f"s_lshl_b32 s81, s{sB}, 11")
    A(f"s_add_u32 s81, s81, {WS_GATE}")
    A(f"s_lshl_b32 s56, s{sH}, 6")
    A("s_add_u32 s56, s56, s81")
    A("s_sub_u32 s56, s56, 512")
    A(f"v_add_u32 v{vPO}, s80, v{vPO}")
    A(f"v_mov_b32 v{vKeep}, -2")
    A("s_mov_b32 exec_lo, 0")
    A(f"v_lshl_add_u32 v{vPO}, v{vLane}, 4, s56")
    A(f"v_mov_b32 v{vKeep}, 0")
    A("s_mov_b32 exec_lo, -1")
    A(f"s_lshr_b32 s56, s{sH}, 3")
    A(f"s_cmp_eq_u32 s56, s{sHW}")
    A(f"s_cselect_b32 s{sEH}, 15, 0")
    if ctl:
        ctl_setup()
        ctl_init()
        if stamps:
            for r in (14, 15, 18): A(f"s_mov_b32 s{r}, 0")
    A(f"s_mov_b32 exec_hi, s{sEH}")
    A(f"buffer_load_dwordx4 v[{vTog}:{vTog+3}], v{vPO}, s[{sWS}:{sWS+3}], 0 offen sc1")
    A("s_mov_b32 exec_hi, -1")
    A(f"s_lshl_b32 s82, s{sB}, 2")
    A(f"s_add_u32 s83, s82, s{sHW}")
    A(f"s_lshl_b32 s56, s{sHW}, 9")
    A("s_add_u32 s81, s81, s56")
    A(f"v_and_b32 v{hT[2]}, 31, v{vLane}")
    A(f"v_lshlrev_b32 v{vGo}, 4, v{hT[2]}")
    A(f"s_cmp_lg_u32 s83, s{sH}")
    A(f"s_cbranch_scc1 {L('noold')}")
    A(f"v_lshlrev_b32 v{hT[0]}, 4, v{vLane}")
    A(f"v_lshlrev_b32 v{hT[3]}, 3, v{hT[2]}")
    A("s_mov_b32 s56, s79")
    for i in range(16):
        A(f"buffer_load_dwordx4 v[{W+4*i}:{W+4*i+3}], v{hT[0]}, s[{sWS}:{sWS+3}], s56 offen offset:{(i%4)*1024} sc1")
        if i % 4 == 3 and i < 15: A("s_add_u32 s56, s56, 4096")
    A(f"buffer_load_dwordx4 v[{vFin}:{vFin+3}], v{vGo}, s[{sWS}:{sWS+3}], s81 offen sc1")
    A(f"buffer_load_dwordx2 v[{vXo}:{vXo+1}], v{hT[3]}, s[{sX}:{sX+3}], s47 offen")
    A("s_waitcnt vmcnt(0)")
    for i in range(64):
        o = vOld + i // 32
        A(f"v_alignbit_b32 v{o}, v{W+i}, v{o}, 1")
    for r in range(4): A(f"v_alignbit_b32 v{vOld+2}, v{vFin+r}, v{vOld+2}, 1")
    A(f"v_mov_b32 v{hT[0]}, 0")
    A(f"v_mov_b32 v{hT[1]}, 1")
    A(f"s_lshl_b32 s56, s83, 2")
    A("s_mov_b64 exec, 1")
    A(f"buffer_store_dword v{hT[1]}, v{hT[0]}, s[{sDbg}:{sDbg+3}], s56 offen sc1")
    A("s_mov_b64 exec, -1")
    LBL(L("noold"))
    A(f"v_lshlrev_b32 v{hT[7]}, 3, v{vLane}")
    for a_i, ptr in enumerate((28, 30, 32)):
        A(f"s_mov_b32 s{sW}, s{ptr}"); A(f"s_mov_b32 s{sW+1}, s{ptr+1}")
        A(f"s_mov_b32 s{sW+2}, 3584"); A(f"s_mov_b32 s{sW+3}, 0x20000")
        for i in range(7):
            r = PW + a_i * 14 + 2 * i
            A(f"buffer_load_dwordx2 v[{r}:{r+1}], v{hT[7]}, s[{sW}:{sW+3}], 0 offen offset:{i*512}")
    stamp()
    A("s_setprio 0")
    for i in range(8):
        ln_apply(vXf + i, vMb, vDen, vRd, hT[0])
        rbf(vXf + i, vXf + i)
    A("s_lshl_b32 s56, s76, 16"); A(f"v_mov_b32 v{vH}, s56")
    A("s_and_b32 s56, s76, 0xffff0000"); A(f"v_writelane_b32 v{vH}, s56, 1")
    A("s_lshl_b32 s56, s77, 16"); A(f"v_writelane_b32 v{vH}, s56, 2")
    A("s_and_b32 s56, s77, 0xffff0000"); A(f"v_writelane_b32 v{vH}, s56, 3")
    A("s_lshl_b32 s78, s78, 16")
    ln_apply(vH, vMb, vDen, vRd, hT[0])
    rbf(vH, vH)
    ln_stats(vXf, vMb, vDen, vRd)
    ln_apply(vH, vMb, vDen, vRd, hT[0])
    rbf(vH, vH)
    A(f"v_mov_b32 v{vGc0}, {f32(GC0)}")
    A(f"v_mov_b32 v{vGc1}, {f32(GC1)}")
    A(f"v_mov_b32 v{vGres}, 0")
    stamp()
    A("s_waitcnt vmcnt(0)")
    stamp()
    for a_i in range(3):
        for i in range(14):
            A(f"v_lshlrev_b32 v{W+a_i*28+2*i}, 16, v{PW+a_i*14+i}")
            A(f"v_and_b32 v{W+a_i*28+2*i+1}, 0xffff0000, v{PW+a_i*14+i}")
    A("s_mov_b32 s57, 0")
    LBL(L("gate"))
    u0, u1, t0, t1, pk, acc = hT[0], hT[1], hT[2], hT[3], hT[4], hT[5]
    A(f"v_readlane_b32 s58, v{vH}, s57")
    A(f"v_mov_b32 v{acc}, 0")
    nop(0)
    for i in range(14):
        w1, b1, w2 = W + 2 * i, W + 28 + 2 * i, W + 56 + 2 * i
        A(f"v_mul_f32 v{u0}, s58, v{w1}")
        A(f"v_mul_f32 v{u1}, s58, v{w1+1}")
        A(f"v_cvt_pk_bf16_f32 v{pk}, v{u0}, v{u1}")
        A(f"v_lshlrev_b32 v{u0}, 16, v{pk}")
        A(f"v_and_b32 v{u1}, 0xffff0000, v{pk}")
        A(f"v_add_f32 v{u0}, v{u0}, v{b1}")
        A(f"v_add_f32 v{u1}, v{u1}, v{b1+1}")
        A(f"v_cvt_pk_bf16_f32 v{pk}, v{u0}, v{u1}")
        A(f"v_lshlrev_b32 v{u0}, 16, v{pk}")
        A(f"v_and_b32 v{u1}, 0xffff0000, v{pk}")
        A(f"v_mul_f32 v{t0}, v{u0}, v{u0}")
        A(f"v_mul_f32 v{t1}, v{u1}, v{u1}")
        A(f"v_fma_f32 v{t0}, v{t0}, v{vGc1}, v{vGc0}")
        A(f"v_fma_f32 v{t1}, v{t1}, v{vGc1}, v{vGc0}")
        A(f"v_mul_f32 v{t0}, v{t0}, v{u0}")
        A(f"v_mul_f32 v{t1}, v{t1}, v{u1}")
        A(f"v_exp_f32 v{t0}, v{t0}")
        A(f"v_exp_f32 v{t1}, v{t1}")
        A(f"v_add_f32 v{t0}, 1.0, v{t0}")
        A(f"v_add_f32 v{t1}, 1.0, v{t1}")
        A(f"v_rcp_f32 v{t0}, v{t0}")
        A(f"v_rcp_f32 v{t1}, v{t1}")
        A(f"v_mul_f32 v{u0}, v{u0}, v{t0}")
        A(f"v_mul_f32 v{u1}, v{u1}, v{t1}")
        A(f"v_cvt_pk_bf16_f32 v{pk}, v{u0}, v{u1}")
        A(f"v_lshlrev_b32 v{u0}, 16, v{pk}")
        A(f"v_and_b32 v{u1}, 0xffff0000, v{pk}")
        A(f"v_fma_f32 v{acc}, v{u0}, v{w2}, v{acc}")
        A(f"v_fma_f32 v{acc}, v{u1}, v{w2+1}, v{acc}")
    wave_reduce(acc, "add", u0)
    rbf(u0, u0)
    A(f"v_add_f32 v{u0}, s78, v{u0}")
    rbf(u0, u0)
    A(f"v_mul_f32 v{t0}, {f32(-math.log2(math.e))}, v{u0}")
    A(f"v_exp_f32 v{t0}, v{t0}")
    nop(0)
    A(f"v_add_f32 v{t0}, 1.0, v{t0}")
    A(f"v_rcp_f32 v{t1}, v{t0}")
    nop(0)
    A(f"v_mul_f32 v{u1}, v{u0}, v{t1}")
    rbf(u1, u1)
    A(f"v_cmp_eq_u32 vcc, s57, v{vLane}")
    nop(1)
    A(f"v_cndmask_b32 v{vGres}, v{vGres}, v{u1}, vcc")
    A("s_add_u32 s57, s57, 1")
    A("s_cmp_lt_u32 s57, 4")
    A(f"s_cbranch_scc1 {L('gate')}")
    A("s_setprio 3")
    A(f"s_lshl_b32 s56, s{sHW}, 4")
    A(f"v_lshl_add_u32 v{hT[0]}, v{vLane}, 2, s56")
    A("s_mov_b64 exec, 15")
    A(f"ds_write_b32 v{hT[0]}, v{vGres} offset:{L_G}")
    A("s_mov_b64 exec, -1")
    stamp()
    def wo_loads():
        A(f"s_mov_b32 s{sW}, s24"); A(f"s_mov_b32 s{sW+1}, s25")
        A(f"s_mov_b32 s{sW+2}, 0x400000"); A(f"s_mov_b32 s{sW+3}, 0x20000")
        A(f"v_lshlrev_b32 v{vWoff}, 4, v{vC}")
        A(f"v_lshl_add_u32 v{vWoff}, v{vG}, 10, v{vWoff}")
        A(f"s_lshl_b32 s{sOff}, s{sH}, 17")
        A(f"s_lshl_b32 s56, s{sHW}, 8")
        A(f"s_add_u32 s{sOff}, s{sOff}, s56")
        for i in range(0 if nowo else 32):
            if i >= WOT: A(f"s_waitcnt vmcnt({WOT-1})")
            A(f"buffer_load_dwordx4 v[{W+4*i}:{W+4*i+3}], v{vWoff}, s[{sW}:{sW+3}], s{sOff} offen {wpol}")
            if i < 31: A(f"s_add_u32 s{sOff}, s{sOff}, 4096")
        A("s_waitcnt vmcnt(0)")
    def ready_poll():
        A(f"s_cmp_lg_u32 s{sHW}, 0")
        A(f"s_cbranch_scc1 {L('cpoll_done')}")
        A(f"s_lshl_b32 s82, s{sB}, 4")
        A(f"v_mov_b32 v{hT[0]}, 0")
        A("s_mov_b32 s57, 0")
        LBL(L("cpoll"))
        A(f"buffer_load_dwordx4 v[{hT[4]}:{hT[7]}], v{hT[0]}, s[{sDbg}:{sDbg+3}], s82 offen sc1")
        A("s_waitcnt vmcnt(0)")
        A(f"v_and_b32 v{hT[4]}, v{hT[4]}, v{hT[5]}")
        A(f"v_and_b32 v{hT[6]}, v{hT[6]}, v{hT[7]}")
        A(f"v_and_b32 v{hT[4]}, v{hT[4]}, v{hT[6]}")
        A("s_add_u32 s57, s57, 1")
        A(f"v_readfirstlane_b32 s56, v{hT[4]}")
        A("s_cmp_ge_u32 s57, 0x400000")
        A(f"s_cbranch_scc1 {L('cpoll_done')}")
        A("s_cmp_lg_u32 s56, 0")
        A(f"s_cbranch_scc1 {L('cpoll_done')}")
        A("s_sleep 32")
        A(f"s_branch {L('cpoll')}")
        LBL(L("cpoll_done"))
    if ctl:
        A(f"s_cmp_eq_u32 s{sHW}, {CK}")
        A(f"s_cbranch_scc1 {L('nowo1')}")
        wo_loads()
        LBL(L("nowo1"))
        ctl_loop("k", CK, 4 * (128 - XK), AK)
    elif WOP == 0: wo_loads()
    A("s_waitcnt vmcnt(0) lgkmcnt(0)")
    for r in range(4):
        A(f"v_and_b32 v{vTog+r}, 1, v{vTog+r}")
        A(f"v_xor_b32 v{vTog+r}, 1, v{vTog+r}")
    stamp()
    A("s_barrier")
    stamp()
    if ctl:
        A(f"s_cmp_lg_u32 s{sHW}, {CK}")
        A(f"s_cbranch_scc1 {L('nowo2')}")
        wo_loads()
        LBL(L("nowo2"))
    elif WOP == 1: wo_loads()
    ready_poll()
    A(f"v_and_b32 v{hT[2]}, 3, v{vLane}")
    A(f"v_lshlrev_b32 v{hT[2]}, 4, v{hT[2]}")
    A(f"ds_read_b128 v[{hT[4]}:{hT[7]}], v{hT[2]} offset:{L_G}")
    A("s_waitcnt lgkmcnt(0)")
    A("s_mov_b32 exec_lo, 0")
    for r in range(4): A(f"v_or_b32 v{vTog+r}, v{vTog+r}, v{hT[4]+r}")
    A("s_mov_b32 exec_lo, -1")
    A(f"v_lshlrev_b32 v{hT[0]}, 4, v{vC}")
    A(f"v_lshl_add_u32 v{hT[0]}, v{vG}, 2, v{hT[0]}")
    if ctl: ctl_loop("v", CV, 4 * (256 - XV), AV)
    A("s_setprio 3")
    stamp()
    A("s_barrier")
    stamp()
    for w in range(4):
        A(f"ds_read2st64_b32 v[{vXf+2*w}:{vXf+2*w+1}], v{hT[0]} offset0:{L_OP//256+2*w} offset1:{L_OP//256+2*w+1}")
    A("s_waitcnt lgkmcnt(0)")
    for k in range(2):
        A(f"v_add_f32 v{vXf+k}, v{vXf+k}, v{vXf+2+k}")
        A(f"v_add_f32 v{vXf+4+k}, v{vXf+4+k}, v{vXf+6+k}")
    for k in range(2):
        A(f"v_add_f32 v{vXf+k}, v{vXf+k}, v{vXf+4+k}")
    for k in range(2):
        A(f"v_cvt_pk_bf16_f32 v{vXs+k}, v{vXf+k}, v{vXf+k}")
    nop(1)
    diag_matvec(vXs, False)
    A(f"s_mov_b32 exec_hi, s{sEH}")
    nop(6)
    for r in range(4): A(f"v_and_or_b32 v{vAcc+r}, v{vAcc+r}, v{vKeep}, v{vTog+r}")
    A(f"buffer_store_dwordx4 v[{vAcc}:{vAcc+3}], v{vPO}, s[{sWS}:{sWS+3}], 0 offen sc1")
    A("s_mov_b32 exec_hi, -1")
    stamp()
    A(f"s_cmp_lg_u32 s83, s{sH}")
    A(f"s_cbranch_scc1 {L('hend')}")
    A(f"v_lshlrev_b32 v{hT[0]}, 4, v{vLane}")
    A("s_mov_b32 s57, 0")
    LBL(L("gpoll"))
    A("s_mov_b32 s56, s79")
    A(f"buffer_load_dwordx4 v[{vFin}:{vFin+3}], v{vGo}, s[{sWS}:{sWS+3}], s81 offen sc1")
    for i in range(16):
        A(f"buffer_load_dwordx4 v[{W+4*i}:{W+4*i+3}], v{hT[0]}, s[{sWS}:{sWS+3}], s56 offen offset:{(i%4)*1024} sc1")
        if i % 4 == 3 and i < 15: A("s_add_u32 s56, s56, 4096")
    for i in range(16):
        A(f"s_waitcnt vmcnt({15-i})")
        if i == 0:
            for r in range(4): A(f"v_alignbit_b32 v{hT[3]}, v{vFin+r}, v{hT[3]}, 1")
            A(f"v_xor_b32 v{hT[3]}, v{hT[3]}, v{vOld+2}")
            A(f"v_or_b32 v{hT[3]}, 0x0fffffff, v{hT[3]}")
            for r in range(4): A(f"v_and_b32 v{vFin+r}, 0xffff0000, v{vFin+r}")
        for r in range(4):
            n = hT[1] + (4 * i + r) // 32
            A(f"v_alignbit_b32 v{n}, v{W+4*i+r}, v{n}, 1")
        if i:
            for r in range(4):
                src = f"v{W+r}" if i == 1 else f"v{vAcc+r}"
                A(f"v_add_f32 v{vAcc+r}, {src}, v{W+4*i+r}")
    A(f"v_xor_b32 v{hT[1]}, v{hT[1]}, v{vOld}")
    A(f"v_xor_b32 v{hT[2]}, v{hT[2]}, v{vOld+1}")
    A(f"v_and_b32 v{hT[1]}, v{hT[1]}, v{hT[3]}")
    A(f"v_and_b32 v{hT[1]}, v{hT[1]}, v{hT[2]}")
    A(f"v_cmp_ne_u32 vcc, -1, v{hT[1]}")
    A("s_add_u32 s57, s57, 1")
    A("s_cmp_ge_u32 s57, 0x400000")
    A(f"s_cbranch_scc1 {L('gdone')}")
    nop(3)
    A(f"s_cbranch_vccnz {L('gpoll')}")
    LBL(L("gdone"))
    for r in range(4): A(f"v_mov_b32 v{hT[r]}, v{vAcc+r}")
    nop(1)
    for r in range(4): A(f"v_permlane32_swap_b32 v{hT[r]}, v{vAcc+r}")
    for r in range(4): A(f"v_add_f32 v{vAcc+r}, v{vAcc+r}, v{hT[r]}")
    for r in range(4): rbf(vAcc + r, vAcc + r)
    for r in range(4): A(f"v_mul_f32 v{vAcc+r}, v{vAcc+r}, v{vFin+r}")
    for r in range(4): rbf(vAcc + r, vAcc + r)
    A(f"v_lshlrev_b32 v{hT[0]}, 16, v{vXo}")
    A(f"v_and_b32 v{hT[1]}, 0xffff0000, v{vXo}")
    A(f"v_lshlrev_b32 v{hT[2]}, 16, v{vXo+1}")
    A(f"v_and_b32 v{hT[3]}, 0xffff0000, v{vXo+1}")
    for r in range(4): A(f"v_add_f32 v{vAcc+r}, v{vAcc+r}, v{hT[r]}")
    A(f"v_cvt_pk_bf16_f32 v{hT[4]}, v{vAcc}, v{vAcc+1}")
    A(f"v_cvt_pk_bf16_f32 v{hT[5]}, v{vAcc+2}, v{vAcc+3}")
    A(f"v_lshlrev_b32 v{hT[0]}, 3, v{vLane}")
    A("s_add_u32 s56, s46, s47")
    A("s_mov_b32 exec_hi, 0")
    A(f"buffer_store_dwordx2 v[{hT[4]}:{hT[5]}], v{hT[0]}, s[{sOut}:{sOut+3}], s56 offen")
    if stamps:
        A("s_waitcnt vmcnt(0)")
        A("s_mov_b64 exec, -1")
        stamp()
        A(f"v_writelane_b32 v{vSt}, s57, 62")
    LBL(L("hend"))
    stamp_flush()
    LBL(L("end"))
    A("s_endpgm")
    return "\n".join(out)

HEADER = open("cdna_kernels/" + NAME + ".s.ref").read().split("; Override launch geometry")[0]

def full(path, **kw):
    kname = NAME + "_kernel"
    body = gen(**kw)
    s = HEADER
    s += f"; @launch grid=(256,1,1) block=(512,1,1) lds={lds_bytes(**kw)}\n"
    s += '.amdgcn_target "amdgcn-amd-amdhsa--gfx950"\n.text\n'
    s += f".globl {kname}\n.p2align 8\n.type {kname},@function\n{kname}:\n"
    s += body + "\n"
    s += f""".section .rodata,"a"
.p2align 6
.amdhsa_kernel {kname}
  .amdhsa_next_free_vgpr 256
  .amdhsa_next_free_sgpr 96
  .amdhsa_accum_offset 256
  .amdhsa_group_segment_fixed_size 0
  .amdhsa_kernarg_size 104
  .amdhsa_user_sgpr_count 2
  .amdhsa_user_sgpr_kernarg_segment_ptr 1
  .amdhsa_system_sgpr_workgroup_id_x 1
  .amdhsa_float_denorm_mode_32 3
.end_amdhsa_kernel
"""
    open(path, "w").write(s)

if __name__ == "__main__":
    kw = {}
    path = "cdna_kernels/" + NAME + ".s"
    for a in sys.argv[1:]:
        k, v = a.split("=")
        if k == "out": path = v
        else: kw[k] = int(v) if v.lstrip("-").isdigit() else v
    full(path, **kw)
```

```python
import sys, struct
NAME = "recurrent_scan__mha_block_cached__mixer_token_mlp__decode"

def f32(x): return "0x%08x" % struct.unpack("<I", struct.pack("<f", x))[0]

import math
SCALE = f32(128 ** -0.5)
LOG2E = f32(math.log2(math.e))
GC0 = -2.0 * math.sqrt(2.0 / math.pi) * math.log2(math.e)
GC1 = GC0 * 0.044715

L_QP = 0
L_ST = 2048
L_OP = 4096
L_SC = 8192
L_G = 6144
L_PR = 2304
L_FL = 2320
L_HO = 2560
L_STG = L_SC + 32768 + 512
WS_PART = 0
WS_GATE = 512 * 1024
WS_CX = 0x200000
WS_CG = 0x280000
WS_BYTES = 0x300000
def lds_bytes(E=16, **kw): return L_STG + 4 * E * 1024

def gen(W="6", RD=8, PDL=8, E=16, HT=8, HW0=12, WOT=4, WOP=0, MIDA=1, MIDB=1, MIDC=2, kname=NAME + "_kernel", stamps=False, pol="nt", rot=1, sprio=1, wpol="nt", nowo=0, perm=0, pst=0, nowq=0, WE=0, NE=1, vpol=None, alt="", fst=0,
        ctl=0, LV="7:6:5", theta=48, bias=0, gbias=300, gn=4, slp=32, XK=6, XV=6, clamp=64, CK=3, CV=2, AK=12, AV=32, krot=0, NP=3, FB=0, wst=4, tst=1, ginc="16", ksh=0, kmask=255, tout=0, tv=0, dsh=3, early=0, opol="def", reh=0, QD=0, QP=0, QT="2111", xp=0, wrot=0, BX=0, BXL=45, LVE="", RDE=0, hp="3033"):
    RG = 8
    wpol = wpol.replace("+", " ").replace("def", "")
    kpol = pol.replace("+", " ").replace("def", "")
    vpol = kpol if vpol is None else vpol.replace("+", " ").replace("def", "")
    pat = [int(c, 16) for c in str(W)]
    assert RD > max(pat) or RD == max(pat) == min(pat)
    assert E % 4 == 0 and E <= 28
    lv = [[int(c, 16) for c in x] for x in LV.split(":")]
    assert RD > max(lv[0])
    R = 4 * RG
    out = []
    def A(s): out.append("    " + s)
    def LBL(s): out.append(s + ":")
    L = lambda s: f"L_{s}"

    vLane = 1
    vMask = [4, 5, 6, 7]
    sWave = 3
    sB, sH = 42, 43
    def nop(n): A(f"s_nop {n}")

    def wave_reduce(v, op, dst, st=60):
        for r in (8, 4, 2, 1):
            nop(1)
            A(f"v_{op}_f32_dpp v{v}, v{v}, v{v} row_ror:{r} row_mask:0xf bank_mask:0xf")
        nop(0)
        for i in range(4):
            A(f"v_readlane_b32 s{st+i}, v{v}, {16*i}")
        nop(0)
        A(f"v_mov_b32 v{dst}, s{st}")
        A(f"v_{op}_f32 v{dst}, s{st+1}, v{dst}")
        A(f"v_{op}_f32 v{dst}, s{st+2}, v{dst}")
        A(f"v_{op}_f32 v{dst}, s{st+3}, v{dst}")

    vSt = 59
    def stamp():
        if not stamps: return
        A("s_memrealtime s[90:91]")
        A("s_waitcnt lgkmcnt(0)")
        A("s_mov_b32 m0, s92")
        A(f"v_writelane_b32 v{vSt}, s90, m0")
        A("s_add_u32 s92, s92, 1")
    def stamp_flush():
        if not stamps: return
        A("s_mov_b64 exec, -1")
        A("s_getreg_b32 s90, hwreg(HW_REG_XCC_ID)")
        A(f"v_writelane_b32 v{vSt}, s90, 63")
        A("s_mov_b32 s84, s40"); A("s_mov_b32 s85, s41"); A("s_mov_b32 s86, 0x1000000"); A("s_mov_b32 s87, 0x20000")
        A("s_lshl_b32 s90, s2, 11")
        A("s_add_u32 s90, s90, 0x100000")
        A("v_lshlrev_b32 v58, 2, v0")
        A(f"buffer_store_dword v{vSt}, v58, s[84:87], s90 offen")
    def rbf(dst, src):
        A(f"v_cvt_pk_bf16_f32 v{dst}, v{src}, v{src}")
        A(f"v_and_b32 v{dst}, 0xffff0000, v{dst}")

    A("s_cmp_ge_u32 s2, 256")
    A(f"s_cbranch_scc1 {L('end')}")
    if perm == 1:
        A("s_lshr_b32 s4, s2, 3"); A("s_and_b32 s2, s2, 7"); A("s_lshl_b32 s2, s2, 5"); A("s_or_b32 s2, s2, s4")
    if perm == 2:
        A("s_and_b32 s4, s2, 7"); A("s_bfe_u32 s5, s2, 0x20003"); A("s_andn2_b32 s2, s2, 31")
        A("s_lshl_b32 s4, s4, 2"); A("s_or_b32 s2, s2, s4"); A("s_or_b32 s2, s2, s5")
    A("s_load_dwordx16 s[16:31], s[0:1], 0")
    A("s_load_dwordx8 s[32:39], s[0:1], 64")
    A("s_load_dwordx2 s[40:41], s[0:1], 96")
    if stamps:
        A("s_mov_b32 s92, 0"); A(f"v_mov_b32 v{vSt}, 0")
        stamp()
    A("v_lshrrev_b32 v2, 6, v0")
    A(f"v_and_b32 v{vLane}, 63, v0")
    A(f"v_readfirstlane_b32 s{sWave}, v2")
    A(f"s_lshr_b32 s{sB}, s2, 5")
    A(f"s_and_b32 s{sH}, s2, 31")
    A(f"v_and_b32 v8, 1, v{vLane}")
    A("v_lshlrev_b32 v8, 4, v8")
    A("v_mov_b32 v9, 0xffff")
    A("v_lshlrev_b32 v8, v8, v9")
    A(f"v_bfe_u32 v9, v{vLane}, 1, 3")
    for m in range(4):
        A(f"v_cmp_eq_u32 vcc, {m}, v9")
        nop(1)
        A(f"v_cndmask_b32 v{vMask[m]}, 0, v8, vcc")
    A(f"s_cmp_ge_u32 s{sWave}, 4")
    A(f"s_cbranch_scc1 {L('helper')}")

    alts = [a.split(":") for a in alt.split(",") if a]
    for i, (lo, hi, kp, vp) in enumerate(alts):
        A(f"s_sub_u32 s55, s2, {lo}")
        A(f"s_cmp_lt_u32 s55, {int(hi) - int(lo)}")
        A(f"s_cbranch_scc1 L_stream{i}")
    i_s0 = len(out)
    vKoff, vVoff = 2, 3
    vM, vLs, vS = 8, 9, 10
    vT = [11, 12, 13, 14, 15]
    D = 16
    O = 20
    vP = [24, 25]
    vS2 = 26
    vLds = 28
    vMg, vRl = 29, 30
    vStg = 31
    BQ = 32
    RING = 64
    TMP = RING + RG * 16
    sK, sV = 44, 48
    sKpos, sVpos, sCnt = 52, 53, 54
    STEP = 16384

    A(f"v_and_b32 v{vKoff}, 3, v{vLane}")
    A(f"v_lshlrev_b32 v{vKoff}, 4, v{vKoff}")
    A(f"v_bfe_u32 v10, v{vLane}, 2, 2")
    A(f"v_lshl_add_u32 v{vKoff}, v10, 8, v{vKoff}")
    A(f"v_lshrrev_b32 v10, 4, v{vLane}")
    A(f"v_lshl_add_u32 v{vKoff}, v10, 6, v{vKoff}")
    A(f"v_lshlrev_b32 v{vVoff}, 4, v{vLane}")
    A("s_lshl_b32 s55, s2, 21")
    A(f"s_mul_i32 s{sKpos}, s{sWave}, {wst * 1024}")
    ginc = [int(x) * 1024 for x in str(ginc).split(".")]
    blocks = set()
    for w_ in range(4):
        p_ = w_ * wst * 1024
        for g_ in range(128):
            for t_ in range(4): blocks.add((p_ + t_ * tst * 1024) // 1024)
            p_ += ginc[g_ % len(ginc)]
    assert blocks == set(range(2048)), "bad block map"
    vKo = [vKoff] * 4; vVo = [vVoff] * 4
    if tst != 1:
        vKo = [vKoff, 52, 53, 54]; vVo = [vVoff, 55, 56, 57]
        for t_ in range(1, 4):
            A(f"v_add_u32 v{vKo[t_]}, {t_ * (tst - 1) * 1024}, v{vKoff}")
            A(f"v_add_u32 v{vVo[t_]}, {t_ * (tst - 1) * 1024}, v{vVoff}")
    if krot:
        A(f"s_lshr_b32 s58, s2, {ksh}")
        A(f"s_and_b32 s58, s58, {kmask}")
        A(f"s_mul_i32 s58, s58, {krot * 16384}")
        A(f"s_add_u32 s{sKpos}, s{sKpos}, s58")
        A(f"s_and_b32 s{sKpos}, s{sKpos}, 0x1fffff")
    A(f"s_mov_b32 s{sVpos}, s{sKpos}")
    A("s_waitcnt lgkmcnt(0)")
    if fst: stamp()
    A(f"s_add_u32 s{sK}, s18, s55"); A(f"s_addc_u32 s{sK+1}, s19, 0")
    A(f"s_mov_b32 s{sK+2}, 0x200000"); A(f"s_mov_b32 s{sK+3}, 0x20000")
    A(f"s_add_u32 s{sV}, s20, s55"); A(f"s_addc_u32 s{sV+1}, s21, 0")
    A(f"s_mov_b32 s{sV+2}, 0x200000"); A(f"s_mov_b32 s{sV+3}, 0x20000")

    st = {"last": -1, "known": -1, "lab": 0, "dyn": False}
    sMode = 57
    vProg, vPrA, vFlA, vFlag = 48, 49, 50, 51
    def group():
        if not st["dyn"]: return
        A("s_waitcnt lgkmcnt(0)")
        A(f"v_readfirstlane_b32 s{sMode}, v{vFlag}")
        A(f"v_add_u32 v{vProg}, 1, v{vProg}")
        A(f"ds_write_b32 v{vPrA}, v{vProg}")
        A(f"ds_read_b32 v{vFlag}, v{vFlA}")
    def wait_vm(n):
        A(f"s_waitcnt vmcnt({n})")
        st["known"] = max(st["known"], st["last"] - n)
    def slot(l):
        if l < R: return RING + l * 4
        if l < R + E: return TMP + ((l - R) % 8) * 4
        return RING + ((l - E) % R) * 4
    def free(l):
        if l < R + E: return True
        return (l - R - E if l < 2 * R + E else l - R) in done
    def need(l):
        assert l <= st["last"]
        if st["known"] < l: wait_vm(st["last"] - l)
    def issue(cap=None):
        l = st["last"] + 1
        if l >= 1024: return
        if cap == "dyn":
            hi, mid, lo = (x[l % len(x)] for x in lv)
            st["lab"] += 1
            lab = f"L_th{st['lab']}@LS@"
            if st["known"] < l - hi: wait_vm(hi - 1)
            if mid < hi:
                A(f"s_cmp_eq_u32 s{sMode}, 0"); A(f"s_cbranch_scc1 {lab}")
                A(f"s_waitcnt vmcnt({mid-1})")
            if lo < mid:
                A(f"s_cmp_lg_u32 s{sMode}, 2"); A(f"s_cbranch_scc1 {lab}")
                A(f"s_waitcnt vmcnt({lo-1})")
            LBL(lab)
        elif cap is not None and st["known"] < l - cap: wait_vm(cap - 1)
        kind = "k" if l < 512 else "v"
        t = l % 4
        srd, pos, vo = (sK, sKpos, vKo[t]) if kind == "k" else (sV, sVpos, vVo[t])
        pol = "@KP@" if kind == "k" else "@VP@"
        if R <= l < R + E:
            if t == 0 or stamps:
                A(f"s_add_u32 m0, s{sStg}, {(l - t - R) * 1024}")
                nop(0)
            A(f"buffer_load_dwordx4 v{vo}, s[{srd}:{srd+3}], s{pos} offen offset:{t*1024} {pol} lds")
        else:
            assert free(l), l
            r = slot(l)
            A(f"buffer_load_dwordx4 v[{r}:{r+3}], v{vo}, s[{srd}:{srd+3}], s{pos} offen offset:{t*1024} {pol}")
        if t == 3:
            A(f"s_add_u32 s{pos}, s{pos}, {ginc[(l // 4) % len(ginc)] & 0xffffffff}")
            if krot: A(f"s_and_b32 s{pos}, s{pos}, 0x1fffff")
        st["last"] = l
        if early and t == 0: group()
    done = set()
    sStg = 56
    A(f"s_mul_i32 s{sStg}, s{sWave}, {E*1024}")
    A(f"s_add_u32 s{sStg}, s{sStg}, {L_STG}")

    if sprio: A(f"s_setprio {sprio}")
    qt = [int(c) for c in str(QT)] if QD else [0, 0, 0, 0]
    n_static = min(R + E, R + E - QD + QP + sum(qt))
    def init_regs():
        A(f"v_mov_b32 v{vM}, 0xff7fffff")
        A(f"v_mov_b32 v{vLs}, 0")
        A(f"v_mov_b32 v{vS}, 0")
        A(f"s_lshl_b32 s55, s{sWave}, 13")
        A(f"s_add_u32 s55, s55, {L_SC}")
        A(f"v_lshl_add_u32 v{vLds}, v{vLane}, 2, s55")
        for r in range(4): A(f"v_mov_b32 v{O+r}, 0")
        A(f"v_add_u32 v{vStg}, s{sStg}, v{vVoff}")
        A(f"v_lshrrev_b32 v{vT[0]}, 2, v{vLane}")
        A(f"v_lshlrev_b32 v{vT[0]}, 5, v{vT[0]}")
        A(f"v_and_b32 v{vT[1]}, 3, v{vLane}")
        if ctl:
            A(f"s_lshl_b32 s55, s{sWave}, 2")
            A(f"s_add_u32 s55, s55, {L_PR}")
            A(f"v_mov_b32 v{vPrA}, s55")
            A(f"v_mov_b32 v{vFlA}, {L_FL}")
            A(f"v_mov_b32 v{vProg}, {(n_static + 3) // 4 - RD // 4 if early else NP * RG}")
            A(f"v_mov_b32 v{vFlag}, 1")
            A(f"s_mov_b32 s{sMode}, 1")
            A(f"ds_write_b32 v{vPrA}, v{vProg}")
            A(f"ds_write_b32 v{vFlA}, v{vFlag}")
            A("s_waitcnt lgkmcnt(0)")
    def tick(n, cap):
        for _ in range(n):
            if st["last"] + 1 < R + E: issue(cap)
    for l in range(R + E - QD):
        issue(PDL)
        if l == PDL - 1: init_regs()
        if pst and l % 8 == 7: stamp()
        if fst and (l == 0 or PDL - 1 <= l < PDL + 8): stamp()
    tick(QP, None)
    stamp()
    A("s_barrier")
    stamp()
    for w in range(4):
        for hlf in range(2):
            r = TMP + w * 8 + hlf * 4
            A(f"ds_read_b128 v[{r}:{r+3}], v{vT[0]} offset:{L_QP + w*512 + hlf*16}")
    tick(qt[0], PDL)
    A("s_waitcnt lgkmcnt(0)")
    for e in range(8):
        A(f"v_add_f32 v{TMP+e}, v{TMP+e}, v{TMP+8+e}")
        A(f"v_add_f32 v{TMP+16+e}, v{TMP+16+e}, v{TMP+24+e}")
    tick(qt[1], PDL)
    for e in range(8):
        A(f"v_add_f32 v{TMP+e}, v{TMP+e}, v{TMP+16+e}")
    for m in range(4):
        A(f"v_cvt_pk_bf16_f32 v{TMP+8+m}, v{TMP+2*m}, v{TMP+2*m+1}")
    tick(qt[2], PDL)
    for t in range(4):
        A(f"v_cmp_eq_u32 vcc, {t}, v{vT[1]}")
        nop(1)
        for m in range(4):
            A(f"v_cndmask_b32 v{BQ+4*t+m}, 0, v{TMP+8+m}, vcc")
    tick(qt[3], PDL)
    nop(1)
    assert st["last"] + 1 == n_static

    cnt = {"c": 0, "pend": 0}
    plan = {}
    capo = {"w": 0}
    def capf(): return capo["w"] or ("dyn" if st["dyn"] else pat[(st["last"] + 1) % len(pat)])
    if early: st["dyn"] = True
    def consume(l, mfma):
        cnt["pend"] += plan.get(cnt["c"], 1)
        need(l)
        A(mfma)
        done.add(l)
        while cnt["pend"] and free(st["last"] + 1):
            issue(capf())
            cnt["pend"] -= 1
        cnt["c"] += 1
    def kstep(j):
        n = j % RG
        u = j % 4
        if R <= 4 * j < R + E: A("s_waitcnt lgkmcnt(0)")
        if R <= 4 * j + 4 < R + E:
            need(4 * j + 7)
            for l in range(4 * j + 4, 4 * j + 8):
                r = slot(l)
                A(f"ds_read_b128 v[{r}:{r+3}], v{vStg} offset:{(l-R)*1024}")
        for t in range(4):
            l = 4 * j + t
            r = slot(l)
            c = "0" if t == 0 else f"v[{D}:{D+3}]"
            consume(l, f"v_mfma_f32_16x16x32_bf16 v[{D}:{D+3}], v[{r}:{r+3}], v[{BQ+4*t}:{BQ+4*t+3}], {c}")
            if t == 0 and not early: group()
        nop(7)
        a, b, c = u ^ 1, u ^ 2, u ^ 3
        A(f"v_add_f32_dpp v{vT[0]}, v{D+b}, v{D+u} row_ror:8 row_mask:0xf bank_mask:0xf")
        A(f"v_add_f32_dpp v{vT[1]}, v{D+c}, v{D+a} row_ror:8 row_mask:0xf bank_mask:0xf")
        nop(1)
        A(f"v_add_f32_dpp v{vS}, v{vT[1]}, v{vT[0]} row_ror:{4 if u & 1 else 12} row_mask:0xf bank_mask:{hex(1 << u)}")
        if u == 3:
            rbf(vT[2], vS)
            A(f"v_mul_f32 v{vT[2]}, {SCALE}, v{vT[2]}")
            rbf(vT[2], vT[2])
            A(f"ds_write_b32 v{vLds}, v{vT[2]} offset:{(n//4)*256}")
            A(f"v_max_f32 v{vT[3]}, v{vM}, v{vT[2]}")
            A(f"v_sub_f32 v{vT[0]}, v{vM}, v{vT[3]}")
            A(f"v_sub_f32 v{vT[1]}, v{vT[2]}, v{vT[3]}")
            A(f"v_mul_f32 v{vT[0]}, {LOG2E}, v{vT[0]}")
            A(f"v_mul_f32 v{vT[1]}, {LOG2E}, v{vT[1]}")
            A(f"v_exp_f32 v{vT[0]}, v{vT[0]}")
            A(f"v_exp_f32 v{vT[1]}, v{vT[1]}")
            A(f"v_mov_b32 v{vM}, v{vT[3]}")
            A(f"v_fma_f32 v{vLs}, v{vLs}, v{vT[0]}, v{vT[1]}")
    def spread(c0, n_consume, n_issue, first):
        for c in range(c0, c0 + n_consume): plan[c] = 0
        first = min(first, n_issue)
        for k in range(first): plan[c0 + k] += 1
        rest = n_issue - first
        for k in range(rest):
            c = c0 + first + ((k + 1) * (n_consume - first)) // rest - 1
            plan[c] += 1
    def rel(): return (st["last"] - cnt["c"], st["known"] - cnt["c"])
    def skip_iters(n):
        st["last"] += R * n; st["known"] += R * n
        for l in range(cnt["c"], cnt["c"] + R * n): done.add(l)
        cnt["c"] += R * n

    NIT = 128 // RG
    spread(0, NP * R, NP * R - 1 + RD - st["last"], FB or max(pat))
    for it in range(NP):
        for j in range(it * RG, (it + 1) * RG): kstep(j)
        A(f"v_add_u32 v{vLds}, {RG*64}, v{vLds}")
        stamp()
    assert cnt["pend"] == 0
    assert st["last"] == NP * R - 1 + RD
    if ctl:
        st["dyn"] = True
        pat = lv[0]
    st["known"] = min(st["known"], st["last"] - pat[st["last"] % len(pat)])
    r0 = rel()
    A(f"s_mov_b32 s{sCnt}, {NIT-1-NP}")
    LBL(L("kloop"))
    for j in range(NP * RG, (NP + 1) * RG): kstep(j)
    A(f"v_add_u32 v{vLds}, {RG*64}, v{vLds}")
    stamp()
    A(f"s_sub_u32 s{sCnt}, s{sCnt}, 1")
    A(f"s_cmp_lg_u32 s{sCnt}, 0")
    A(f"s_cbranch_scc1 {L('kloop')}")
    assert rel() == r0, (rel(), r0)
    skip_iters(NIT - 2 - NP)
    for j in range(128 - RG, 128): kstep(j)
    assert st["last"] == 511 + RD
    stamp()
    for _ in range(MIDA): issue()
    A(f"v_subrev_u32 v{vLds}, {8192 - RG*64}, v{vLds}")
    A(f"v_mov_b32 v{vT[0]}, v{vM}")
    wave_reduce(vT[0], "max", vT[2])
    A(f"v_sub_f32 v{vT[0]}, v{vM}, v{vT[2]}")
    A(f"v_mul_f32 v{vT[0]}, {LOG2E}, v{vT[0]}")
    A(f"v_exp_f32 v{vT[0]}, v{vT[0]}")
    nop(0)
    A(f"v_mul_f32 v{vT[0]}, v{vLs}, v{vT[0]}")
    for _ in range(MIDB): issue()
    wave_reduce(vT[0], "add", vT[3])
    A(f"v_mov_b32 v{D}, v{vT[2]}")
    A(f"v_mov_b32 v{D+1}, v{vT[3]}")
    A(f"s_lshl_b32 s55, s{sWave}, 3")
    A(f"v_mov_b32 v{vT[0]}, s55")
    A(f"v_mov_b32 v{vT[1]}, 0")
    A("s_mov_b64 exec, 1")
    A(f"ds_write_b64 v{vT[0]}, v[{D}:{D+1}] offset:{L_ST}")
    A("s_mov_b64 exec, -1")
    A(f"ds_read2st64_b32 v[{vS2}:{vS2+1}], v{vLds} offset0:0 offset1:1")
    for _ in range(MIDC): issue()
    A("s_waitcnt lgkmcnt(0)")
    stamp()
    A("s_barrier")
    stamp()
    A(f"ds_read_b128 v[{TMP}:{TMP+3}], v{vT[1]} offset:{L_ST}")
    A(f"ds_read_b128 v[{TMP+4}:{TMP+7}], v{vT[1]} offset:{L_ST+16}")
    A("s_waitcnt lgkmcnt(0)")
    A(f"v_max3_f32 v{vMg}, v{TMP}, v{TMP+2}, v{TMP+4}")
    A(f"v_max_f32 v{vMg}, v{vMg}, v{TMP+6}")
    for w in range(4):
        A(f"v_sub_f32 v{TMP+2*w}, v{TMP+2*w}, v{vMg}")
        A(f"v_mul_f32 v{TMP+2*w}, {LOG2E}, v{TMP+2*w}")
        A(f"v_exp_f32 v{TMP+2*w}, v{TMP+2*w}")
    nop(0)
    A(f"v_mul_f32 v{vT[0]}, v{TMP}, v{TMP+1}")
    for w in range(1, 4):
        A(f"v_fma_f32 v{vT[0]}, v{TMP+2*w}, v{TMP+2*w+1}, v{vT[0]}")
    A(f"v_rcp_f32 v{vRl}, v{vT[0]}")
    nop(0)
    A(f"v_fma_f32 v{vT[1]}, -v{vT[0]}, v{vRl}, 1.0")
    A(f"v_fma_f32 v{vRl}, v{vT[1]}, v{vRl}, v{vRl}")

    assert RG == 8, "V loop is written for 2 P registers per iteration"
    def vhead():
        stamp()
        A("s_waitcnt lgkmcnt(0)")
        for i in range(2): A(f"v_sub_f32 v{vP[i]}, v{vS2+i}, v{vMg}")
        for i in range(2): A(f"v_mul_f32 v{vP[i]}, {LOG2E}, v{vP[i]}")
        for i in range(2): A(f"v_exp_f32 v{vP[i]}, v{vP[i]}")
        A(f"v_add_u32 v{vLds}, 512, v{vLds}")
        for i in range(2): A(f"v_mul_f32 v{vP[i]}, v{vP[i]}, v{vRl}")
        for i in range(2): A(f"v_cvt_pk_bf16_f32 v{vP[i]}, v{vP[i]}, v{vP[i]}")
        A(f"ds_read2st64_b32 v[{vS2}:{vS2+1}], v{vLds} offset0:0 offset1:1")
        nop(0)
    def vstep(j):
        n = j % RG
        u = j % 4
        p = vP[n // 4]
        for t in range(4):
            for m in range(4):
                A(f"v_and_b32_dpp v{BQ+4*t+m}, v{p}, v{vMask[m]} row_newbcast:{u*4+t} row_mask:0xf bank_mask:0xf")
        for t in range(4):
            l = 4 * j + t
            r = slot(l)
            consume(l, f"v_mfma_f32_16x16x32_bf16 v[{O}:{O+3}], v[{BQ+4*t}:{BQ+4*t+3}], v[{r}:{r+3}], v[{O}:{O+3}]")
            if t == 0 and not early: group()
    spread(512, R, 512 + R - 1 + RD - st["last"], 2)
    vhead()
    for j in range(128, 128 + RG): vstep(j)
    assert st["last"] == 512 + R - 1 + RD
    st["known"] = min(st["known"], st["last"] - pat[st["last"] % len(pat)])
    r0 = rel()
    A(f"s_mov_b32 s{sCnt}, {NIT-1-NE}")
    LBL(L("vloop"))
    vhead()
    for j in range(128 + RG, 128 + 2 * RG): vstep(j)
    A(f"s_sub_u32 s{sCnt}, s{sCnt}, 1")
    A(f"s_cmp_lg_u32 s{sCnt}, 0")
    A(f"s_cbranch_scc1 {L('vloop')}")
    assert rel() == r0, (rel(), r0)
    skip_iters(NIT - 2 - NE)
    if LVE:
        lv = [[int(c, 16) for c in x] for x in LVE.split(":")]
        assert RDE > max(lv[0])
        for k in range(RDE - RD): plan[cnt["c"] + 2 * k] = 2
    if WE:
        capo["w"] = WE
        for k in range(WE + 2 - RD): plan[cnt["c"] + 2 * k] = 2
    for it in range(NE):
        vhead()
        for j in range(256 - (NE - it) * RG, 256 - (NE - it - 1) * RG): vstep(j)
    assert st["last"] == 1023
    A(f"v_and_b32 v{vT[0]}, 15, v{vLane}")
    A(f"v_lshlrev_b32 v{vT[0]}, 5, v{vT[0]}")
    A(f"v_lshrrev_b32 v{vT[1]}, 4, v{vLane}")
    A(f"v_lshl_add_u32 v{vT[0]}, v{vT[1]}, 4, v{vT[0]}")
    A(f"s_lshl_b32 s55, s{sWave}, 9")
    A(f"v_add_u32 v{vT[0]}, s55, v{vT[0]}")
    A("s_mov_b32 exec_hi, 0")
    nop(2)
    A(f"ds_write_b128 v{vT[0]}, v[{O}:{O+3}] offset:{L_OP}")
    A("s_waitcnt lgkmcnt(0)")
    stamp()
    A("s_barrier")
    stamp()
    stamp_flush()
    A("s_endpgm")
    body = out[i_s0:]
    del out[i_s0:]
    fix = lambda p: p.replace("+", " ").replace("def", "")
    out.extend(x.replace("@KP@", kpol).replace("@VP@", vpol).replace("@LS@", "") for x in body)
    for i, (lo, hi, kp, vp) in enumerate(alts):
        LBL(f"L_stream{i}")
        out.extend(x.replace("@KP@", fix(kp)).replace("@VP@", fix(vp)).replace("L_kloop", f"L_kloop{i}").replace("L_vloop", f"L_vloop{i}").replace("@LS@", f"_{i}") for x in body)

    LBL(L("helper"))
    sHW = 44
    sX, sW, sWS, sDbg, sOut = 48, 52, 64, 68, 72
    sOff = 45
    vG, vC = 2, 3
    vX4 = 8
    vXs = 12
    vXf = 16
    vMu, vMb, vDen, vRd = 24, 25, 26, 27
    vA = 28
    vAcc = 36
    hT = [40, 41, 42, 43, 44, 45, 46, 47]
    vWoff = 48
    vPO = 49
    vH = 52
    vOld = 53
    vKeep, vGo = 14, 15
    sEH = 84 if not stamps else 93
    vTog = 8
    vGres = 56
    vGc0, vGc1 = 57, 58
    vFin = 60
    vXo = 50
    W = 64
    PW = 192
    A(f"s_setprio {str(hp)[0]}")
    A(f"s_sub_u32 s{sHW}, s{sWave}, 4")
    A(f"v_lshrrev_b32 v{vG}, 4, v{vLane}")
    A(f"v_and_b32 v{vC}, 15, v{vLane}")
    A(f"v_lshlrev_b32 v{hT[0]}, 4, v{vLane}")
    A(f"s_lshl_b32 s56, s{sB}, 2")
    if not rot: A("s_mov_b32 s56, 0")
    A(f"v_add_u32 v{hT[1]}, s56, v{vC}")
    A(f"v_add_u32 v{hT[2]}, 16, v{hT[1]}")
    A(f"v_and_b32 v{hT[1]}, 31, v{hT[1]}")
    A(f"v_and_b32 v{hT[2]}, 31, v{hT[2]}")
    A(f"v_lshlrev_b32 v{hT[1]}, 3, v{hT[1]}")
    A(f"v_lshlrev_b32 v{hT[2]}, 3, v{hT[2]}")
    A(f"v_lshl_add_u32 v{hT[1]}, v{vG}, 1, v{hT[1]}")
    A(f"v_lshl_add_u32 v{hT[2]}, v{vG}, 1, v{hT[2]}")
    A(f"s_lshl_b32 s{sOff}, s56, 15")
    A(f"v_lshlrev_b32 v{vWoff}, 4, v{vC}")
    A(f"v_lshl_add_u32 v{vWoff}, v{vG}, 13, v{vWoff}")
    A(f"v_lshlrev_b32 v{vPO}, 5, v{vC}")
    A(f"v_lshl_add_u32 v{vPO}, v{vG}, 4, v{vPO}")
    A(f"s_lshl_b32 s46, s{sB}, 10")
    A(f"s_lshl_b32 s47, s{sHW}, 8")
    A(f"s_lshl_b32 s57, s{sHW}, 20")
    A(f"s_lshl_b32 s56, s{sH}, 8")
    A(f"s_add_u32 s57, s57, s56")
    A("s_waitcnt lgkmcnt(0)")
    A(f"s_add_u32 s{sX}, s16, s46"); A(f"s_addc_u32 s{sX+1}, s17, 0")
    A(f"s_mov_b32 s{sX+2}, 1024"); A(f"s_mov_b32 s{sX+3}, 0x20000")
    A(f"s_add_u32 s{sW}, s22, s57"); A(f"s_addc_u32 s{sW+1}, s23, 0")
    A(f"s_sub_u32 s{sW+2}, 0x100000, s56"); A(f"s_mov_b32 s{sW+3}, 0x20000")
    if nowq == 1: A(f"s_mov_b32 s{sW+2}, 0")
    A(f"buffer_load_dwordx4 v[{vX4}:{vX4+3}], v{hT[0]}, s[{sX}:{sX+3}], 0 offen")
    A(f"buffer_load_ushort v{vXs}, v{hT[1]}, s[{sX}:{sX+3}], s47 offen")
    A(f"buffer_load_ushort v{vXs+1}, v{hT[2]}, s[{sX}:{sX+3}], s47 offen")
    hs = {"last": -1}
    def wq_issue(i):
        assert i == hs["last"] + 1
        if nowq != 2: A(f"buffer_load_dwordx4 v[{W+4*i}:{W+4*i+3}], v{vWoff}, s[{sW}:{sW+3}], s{sOff} offen {wpol}")
        if i < 31:
            A(f"s_add_u32 s{sOff}, s{sOff}, 32768")
            A(f"s_and_b32 s{sOff}, s{sOff}, 0xfffff")
        hs["last"] = i
    for i in range(HW0): wq_issue(i)
    A(f"s_lshl_b32 s56, s{sH}, 5")
    A(f"s_lshl_b32 s57, s{sHW}, 3")
    A("s_add_u32 s56, s56, s57")
    A(f"s_add_u32 s58, s{sX}, s56"); A(f"s_addc_u32 s59, s{sX+1}, 0")
    A("s_load_dwordx2 s[76:77], s[58:59], 0")
    A("s_load_dword s78, s[34:35], 0")


    cPG, cDf, cSlot, cL4, cGl, cGo, c128, cP, cS, cG, cT, cT2, cZ, cFA = range(236, 250)
    cQ = 232
    sCX, sCG, sPrev, sGn, sCur, sD, sSx, sE, sMd, sDue = 4, 5, 6, 7, 8, 9, 10, 11, 12, 13
    sRng = 94
    sRd = [18, 19, 20, 21, 22, 23, 26, 27]
    def ctl_setup():
        A(f"s_getreg_b32 s{sCX}, hwreg(HW_REG_XCC_ID)")
        A(f"s_and_b32 s{sCX}, s{sCX}, 15")
        A(f"s_mul_i32 s{sCX}, s{sCX}, 4352")
        A(f"s_add_u32 s{sCX}, s{sCX}, {WS_CX}")
        A(f"s_mov_b32 s{sCG}, {WS_CG}")
        A("s_lshr_b32 s56, s2, 3"); A("s_lshl_b32 s56, s56, 2")
        A(f"v_mov_b32 v{cSlot}, s56")
        A(f"v_lshlrev_b32 v{cL4}, 2, v{vLane}")
        A(f"v_and_b32 v{cGl}, 7, v{vLane}")
        A(f"v_mul_u32_u24 v{cGl}, 4352, v{cGl}")
        A("s_and_b32 s56, s2, 7"); A("s_mul_i32 s56, s56, 4352")
        A(f"v_mov_b32 v{cGo}, s56")
        A(f"v_mov_b32 v{c128}, 128")
        for r in (cPG, cDf, cS, cG, cZ): A(f"v_mov_b32 v{r}, 0")
        A(f"v_mov_b32 v{cFA}, {L_FL}")
        A(f"s_mov_b32 s{sGn}, {gn - 1}")
        A(f"s_mov_b32 s{sRng}, 1536")
    def ctl_init():
        A(f"s_cmp_lg_u32 s{sHW}, {CK}")
        A(f"s_cbranch_scc1 {L('cinit_done')}")
        A("s_mov_b64 exec, 1")
        A(f"buffer_store_dword v{cZ}, v{cSlot}, s[{sWS}:{sWS+3}], s{sCX} offen")
        A("s_cmp_ge_u32 s2, 8")
        A(f"s_cbranch_scc1 {L('cinit_done')}")
        A(f"buffer_store_dword v{cZ}, v{c128}, s[{sWS}:{sWS+3}], s{sCX} offen")
        LBL(L("cinit_done"))
        A("s_mov_b64 exec, -1")
    def ctl_loop(tag, wave, lim, adv, bar=False):
        A(f"s_cmp_lg_u32 s{sHW}, {wave}")
        A(f"s_cbranch_scc1 {L('cskip' + tag)}")
        A(f"v_lshlrev_b32 v{cT}, 3, v{vLane}")
        if tag == "v":
            A("s_mov_b64 exec, 0xff")
            A(f"ds_read_b64 v[{cPG}:{cDf}], v{cT} offset:{L_HO}")
        A("s_mov_b64 exec, 1")
        A(f"ds_read_b128 v[{cQ}:{cQ+3}], v{cZ} offset:{L_PR}")
        A("s_waitcnt lgkmcnt(0)")
        A(f"v_add_u32 v{cQ}, v{cQ}, v{cQ+1}"); A(f"v_add3_u32 v{cP}, v{cQ}, v{cQ+2}, v{cQ+3}")
        nop(1)
        A(f"v_readfirstlane_b32 s{sPrev}, v{cP}")
        LBL(L("cloop" + tag))
        A(f"s_sleep {slp}")
        A("s_mov_b64 exec, 1")
        A(f"ds_read_b128 v[{cQ}:{cQ+3}], v{cZ} offset:{L_PR}")
        A("s_waitcnt lgkmcnt(0)")
        A(f"v_add_u32 v{cQ}, v{cQ}, v{cQ+1}"); A(f"v_add3_u32 v{cP}, v{cQ}, v{cQ+2}, v{cQ+3}")
        nop(1)
        A(f"v_readfirstlane_b32 s{sCur}, v{cP}")
        nop(0)
        A(f"s_cmp_ge_u32 s{sCur}, {lim}")
        A(f"s_cbranch_scc1 {L('cexit' + tag)}")
        A(f"buffer_store_dword v{cP}, v{cSlot}, s[{sWS}:{sWS+3}], s{sCX} offen")
        A("s_mov_b32 exec_lo, -1"); A("s_mov_b32 exec_hi, 1")
        A(f"buffer_load_dword v{cS}, v{cL4}, s[{sWS}:{sWS+3}], s{sCX} offen sc1")
        A(f"s_add_u32 s{sGn}, s{sGn}, 1"); A(f"s_cmp_ge_u32 s{sGn}, {gn}"); A(f"s_cselect_b32 s{sGn}, 0, s{sGn}")
        A("s_cmp_ge_u32 s2, 8")
        A(f"s_cbranch_scc1 {L('cn1' + tag)}")
        A("s_mov_b64 exec, 0xff")
        A(f"buffer_load_dword v{cG}, v{cGl}, s[{sWS}:{sWS+3}], s{sCG} offen sc1")
        LBL(L("cn1" + tag))
        A("s_mov_b64 exec, -1")
        A(f"s_sub_i32 s56, s{sCur}, {clamp}"); A(f"s_add_i32 s57, s{sCur}, {clamp}")
        A(f"v_mov_b32 v{cT}, s57")
        A("s_waitcnt vmcnt(0)")
        A(f"v_readlane_b32 s{sD}, v{cS}, 32")
        A(f"v_med3_i32 v{cS}, v{cS}, s56, v{cT}")
        for r in (8, 4, 2, 1):
            nop(1); A(f"v_add_u32_dpp v{cS}, v{cS}, v{cS} row_ror:{r} row_mask:0xf bank_mask:0xf")
        nop(0)
        A(f"v_readlane_b32 s{sSx}, v{cS}, 0"); A(f"v_readlane_b32 s56, v{cS}, 16")
        nop(3)
        A(f"s_add_u32 s{sSx}, s{sSx}, s56")
        A("s_cmp_ge_u32 s2, 8")
        A(f"s_cbranch_scc1 {L('cn2' + tag)}")
        A(f"v_cmp_ne_u32 vcc, v{cG}, v{cPG}")
        A(f"v_sub_u32 v{cT}, s{sSx}, v{cG}")
        A(f"v_subrev_u32 v{cT}, {gbias}, v{cT}")
        A(f"v_add_u32 v{cT2}, 768, v{cT}")
        A(f"v_cmp_gt_u32 s[56:57], s{sRng}, v{cT2}")
        A("s_and_b64 vcc, vcc, s[56:57]")
        A(f"v_cndmask_b32 v{cDf}, v{cDf}, v{cT}, vcc")
        A(f"v_mov_b32 v{cPG}, v{cG}")
        A(f"v_writelane_b32 v{cDf}, 0, s2")
        nop(0)
        for i in range(8): A(f"v_readlane_b32 s{sRd[i]}, v{cDf}, {i}")
        nop(3)
        for i in range(1, 8): A(f"s_add_u32 s{sRd[0]}, s{sRd[0]}, s{sRd[i]}")
        A(f"s_ashr_i32 s{sD}, s{sRd[0]}, {dsh}")
        A("s_mov_b64 exec, 1")
        A(f"v_mov_b32 v{cT}, s{sSx}"); A(f"v_mov_b32 v{cT2}, s{sD}")
        A(f"buffer_store_dword v{cT2}, v{c128}, s[{sWS}:{sWS+3}], s{sCX} offen")
        A(f"s_cmp_lg_u32 s{sGn}, 0")
        A(f"s_cbranch_scc1 {L('cn2' + tag)}")
        A(f"buffer_store_dword v{cT}, v{cGo}, s[{sWS}:{sWS+3}], s{sCG} offen sc1")
        LBL(L("cn2" + tag))
        A(f"s_add_u32 s{sE}, s{sCur}, s{sPrev}"); A(f"s_lshl_b32 s{sE}, s{sE}, 4")
        A(f"s_sub_i32 s{sE}, s{sE}, s{sSx}")
        A(f"s_add_i32 s{sE}, s{sE}, s{sD}")
        A(f"s_mov_b32 s{sPrev}, s{sCur}")
        if BX and tag == "k":
            A(f"s_cmp_lt_u32 s{sCur}, {4 * BXL}"); A(f"s_cselect_b32 s56, {BX}, 0")
            A(f"s_sub_i32 s{sE}, s{sE}, s56")
        A(f"s_mov_b32 s{sMd}, 1")
        A(f"s_cmp_gt_i32 s{sE}, {bias+theta}"); A(f"s_cselect_b32 s{sMd}, 2, s{sMd}")
        A(f"s_cmp_lt_i32 s{sE}, {bias-theta}"); A(f"s_cselect_b32 s{sMd}, 0, s{sMd}")
        A("s_mov_b64 exec, 1")
        A(f"v_mov_b32 v{cT}, s{sMd}")
        A(f"ds_write_b32 v{cFA}, v{cT}")
        if stamps:
            A("s_add_u32 s14, s14, 1")
            A(f"s_cmp_eq_u32 s{sMd}, 0"); A("s_addc_u32 s15, s15, 0")
            A(f"s_cmp_eq_u32 s{sMd}, 2"); A("s_addc_u32 s13, s13, 0")
        A(f"s_branch {L('cloop' + tag)}")
        LBL(L("cexit" + tag))
        A(f"v_add_u32 v{cP}, {adv}, v{cP}")
        A(f"buffer_store_dword v{cP}, v{cSlot}, s[{sWS}:{sWS+3}], s{sCX} offen")
        if tag == "k":
            A("s_mov_b64 exec, 0xff")
            A(f"v_lshlrev_b32 v{cT}, 3, v{vLane}")
            A(f"ds_write_b64 v{cT}, v[{cPG}:{cDf}] offset:{L_HO}")
        A("s_mov_b64 exec, -1")
        if stamps:
            A(f"v_writelane_b32 v{vSt}, s14, 56"); A(f"v_writelane_b32 v{vSt}, s15, 57"); A(f"v_writelane_b32 v{vSt}, s13, 58")
        if bar:
            A("s_waitcnt lgkmcnt(0)")
            A("s_barrier")
        LBL(L("cskip" + tag))

    def unpack8(src, dst):
        for i in range(4):
            A(f"v_lshlrev_b32 v{dst+2*i}, 16, v{src+i}")
            A(f"v_and_b32 v{dst+2*i+1}, 0xffff0000, v{src+i}")
    def ln_stats(xf, mb, den, rd):
        t0, t1, t2 = hT[0], hT[1], hT[2]
        A(f"v_add_f32 v{t0}, v{xf}, v{xf+1}")
        A(f"v_add_f32 v{t1}, v{xf+2}, v{xf+3}")
        A(f"v_add_f32 v{t2}, v{xf+4}, v{xf+5}")
        A(f"v_add_f32 v{t0}, v{t0}, v{t1}")
        A(f"v_add_f32 v{t1}, v{xf+6}, v{xf+7}")
        A(f"v_add_f32 v{t1}, v{t1}, v{t2}")
        A(f"v_add_f32 v{t0}, v{t0}, v{t1}")
        wave_reduce(t0, "add", vMu)
        A(f"v_mul_f32 v{vMu}, {f32(1/512)}, v{vMu}")
        A(f"v_sub_f32 v{t1}, v{xf}, v{vMu}")
        A(f"v_mul_f32 v{t0}, v{t1}, v{t1}")
        for i in range(1, 8):
            A(f"v_sub_f32 v{t1}, v{xf+i}, v{vMu}")
            A(f"v_fma_f32 v{t0}, v{t1}, v{t1}, v{t0}")
        wave_reduce(t0, "add", den)
        A(f"v_mul_f32 v{den}, {f32(1/512)}, v{den}")
        rbf(mb, vMu)
        rbf(den, den)
        A(f"v_add_f32 v{den}, {f32(1e-5)}, v{den}")
        rbf(den, den)
        A(f"v_sqrt_f32 v{den}, v{den}")
        nop(0)
        rbf(den, den)
        A(f"v_rcp_f32 v{rd}, v{den}")
        nop(0)
    def ln_apply(v, mb, den, rd, tmp):
        A(f"v_sub_f32 v{v}, v{v}, v{mb}")
        rbf(v, v)
        A(f"v_mul_f32 v{tmp}, v{v}, v{rd}")
        A(f"v_fma_f32 v{v}, -v{tmp}, v{den}, v{v}")
        A(f"v_fma_f32 v{v}, v{v}, v{rd}, v{tmp}")

    stamp()
    A(f"s_waitcnt vmcnt({HW0+2})")
    stamp()
    unpack8(vX4, vXf)
    ln_stats(vXf, vMb, vDen, vRd)
    A(f"s_waitcnt vmcnt({HW0})")
    for k in range(2):
        A(f"v_lshlrev_b32 v{vXs+k}, 16, v{vXs+k}")
        ln_apply(vXs + k, vMb, vDen, vRd, hT[0])
        A(f"v_cvt_pk_bf16_f32 v{vXs+k}, v{vXs+k}, v{vXs+k}")
    nop(1)
    def diag_matvec(src, waits):
        def mkA(i):
            for m in range(4):
                A(f"v_and_b32_dpp v{vA+4*(i&1)+m}, v{src+(i>>4)}, v{vMask[m]} row_newbcast:{i&15} row_mask:0xf bank_mask:0xf")
        mkA(0)
        for i in range(32):
            if i < 31: mkA(i + 1)
            else: nop(1)
            if waits:
                A(f"s_waitcnt vmcnt({hs['last']-i})")
                if i + HT > hs["last"] and i + HT < 32: wq_issue(i + HT)
            c = "0" if i == 0 else f"v[{vAcc}:{vAcc+3}]"
            a = vA + 4 * (i & 1)
            A(f"v_mfma_f32_16x16x32_bf16 v[{vAcc}:{vAcc+3}], v[{a}:{a+3}], v[{W+4*i}:{W+4*i+3}], {c}")
    stamp()
    diag_matvec(vXs, True)
    stamp()
    A(f"s_lshl_b32 s56, s{sHW}, 9")
    A(f"v_add_u32 v{hT[0]}, s56, v{vPO}")
    A("s_mov_b32 exec_hi, 0")
    nop(5)
    A(f"ds_write_b128 v{hT[0]}, v[{vAcc}:{vAcc+3}] offset:{L_QP}")
    A("s_mov_b32 exec_hi, -1")
    A("s_waitcnt lgkmcnt(0)")
    A("s_barrier")
    stamp()
    if str(hp)[3] != str(hp)[0]: A(f"s_setprio {str(hp)[3]}")
    A(f"s_mov_b32 s{sWS}, s40"); A(f"s_mov_b32 s{sWS+1}, s41")
    A(f"s_mov_b32 s{sWS+2}, {WS_BYTES}"); A(f"s_mov_b32 s{sWS+3}, 0x20000")
    A(f"s_mov_b32 s{sDbg}, s38"); A(f"s_mov_b32 s{sDbg+1}, s39")
    A(f"s_mov_b32 s{sDbg+2}, 256"); A(f"s_mov_b32 s{sDbg+3}, 0x20000")
    A(f"s_mov_b32 s{sOut}, s36"); A(f"s_mov_b32 s{sOut+1}, s37")
    A(f"s_mov_b32 s{sOut+2}, 8192"); A(f"s_mov_b32 s{sOut+3}, 0x20000")
    A(f"s_lshl_b32 s79, s{sB}, 2")
    A(f"s_add_u32 s79, s79, s{sHW}")
    A("s_lshl_b32 s79, s79, 14")
    A(f"s_lshl_b32 s80, s{sH}, 9")
    A("s_add_u32 s80, s80, s79")
    A(f"s_lshl_b32 s81, s{sB}, 11")
    A(f"s_add_u32 s81, s81, {WS_GATE}")
    A(f"s_lshl_b32 s56, s{sH}, 6")
    A("s_add_u32 s56, s56, s81")
    A("s_sub_u32 s56, s56, 512")
    A(f"v_add_u32 v{vPO}, s80, v{vPO}")
    A(f"v_mov_b32 v{vKeep}, -2")
    A("s_mov_b32 exec_lo, 0")
    A(f"v_lshl_add_u32 v{vPO}, v{vLane}, 4, s56")
    A(f"v_mov_b32 v{vKeep}, 0")
    A("s_mov_b32 exec_lo, -1")
    A(f"s_lshr_b32 s56, s{sH}, 3")
    A(f"s_cmp_eq_u32 s56, s{sHW}")
    A(f"s_cselect_b32 s{sEH}, 15, 0")
    if ctl:
        ctl_setup()
        ctl_init()
        if stamps:
            for r in (14, 15, 13): A(f"s_mov_b32 s{r}, 0")
    A(f"s_mov_b32 exec_hi, s{sEH}")
    A(f"buffer_load_dwordx4 v[{vTog}:{vTog+3}], v{vPO}, s[{sWS}:{sWS+3}], 0 offen sc1")
    A("s_mov_b32 exec_hi, -1")
    A(f"s_lshl_b32 s82, s{sB}, 2")
    A(f"s_add_u32 s83, s82, s{sHW}")
    A(f"s_lshl_b32 s56, s{sHW}, 9")
    A("s_add_u32 s81, s81, s56")
    A(f"v_and_b32 v{hT[2]}, 31, v{vLane}")
    A(f"v_lshlrev_b32 v{vGo}, 4, v{hT[2]}")
    A(f"s_cmp_lg_u32 s83, s{sH}")
    A(f"s_cbranch_scc1 {L('noold')}")
    A(f"v_lshlrev_b32 v{hT[0]}, 4, v{vLane}")
    A(f"v_lshlrev_b32 v{hT[3]}, 3, v{hT[2]}")
    A("s_mov_b32 s56, s79")
    for i in range(16):
        A(f"buffer_load_dwordx4 v[{W+4*i}:{W+4*i+3}], v{hT[0]}, s[{sWS}:{sWS+3}], s56 offen offset:{(i%4)*1024} sc1")
        if i % 4 == 3 and i < 15: A("s_add_u32 s56, s56, 4096")
    A(f"buffer_load_dwordx4 v[{vFin}:{vFin+3}], v{vGo}, s[{sWS}:{sWS+3}], s81 offen sc1")
    A(f"buffer_load_dwordx2 v[{vXo}:{vXo+1}], v{hT[3]}, s[{sX}:{sX+3}], s47 offen")
    A("s_waitcnt vmcnt(0)")
    for i in range(64):
        o = vOld + i // 32
        A(f"v_alignbit_b32 v{o}, v{W+i}, v{o}, 1")
    for r in range(4): A(f"v_alignbit_b32 v{vOld+2}, v{vFin+r}, v{vOld+2}, 1")
    A(f"v_mov_b32 v{hT[0]}, 0")
    A(f"v_mov_b32 v{hT[1]}, 1")
    A(f"s_lshl_b32 s56, s83, 2")
    A("s_mov_b64 exec, 1")
    if not xp & 1: A(f"buffer_store_dword v{hT[1]}, v{hT[0]}, s[{sDbg}:{sDbg+3}], s56 offen sc1")
    A("s_mov_b64 exec, -1")
    LBL(L("noold"))
    if early:
        ctl_loop("k", CK, 4 * (128 - XK), AK, bar=True)
    A(f"v_lshlrev_b32 v{hT[7]}, 3, v{vLane}")
    for a_i, ptr in enumerate((28, 30, 32)):
        A(f"s_mov_b32 s{sW}, s{ptr}"); A(f"s_mov_b32 s{sW+1}, s{ptr+1}")
        A(f"s_mov_b32 s{sW+2}, 3584"); A(f"s_mov_b32 s{sW+3}, 0x20000")
        for i in range(0 if xp & 4 else 7):
            r = PW + a_i * 14 + 2 * i
            A(f"buffer_load_dwordx2 v[{r}:{r+1}], v{hT[7]}, s[{sW}:{sW+3}], 0 offen offset:{i*512}")
    stamp()
    A(f"s_setprio {str(hp)[1]}")
    for i in range(8):
        ln_apply(vXf + i, vMb, vDen, vRd, hT[0])
        rbf(vXf + i, vXf + i)
    A("s_lshl_b32 s56, s76, 16"); A(f"v_mov_b32 v{vH}, s56")
    A("s_and_b32 s56, s76, 0xffff0000"); A(f"v_writelane_b32 v{vH}, s56, 1")
    A("s_lshl_b32 s56, s77, 16"); A(f"v_writelane_b32 v{vH}, s56, 2")
    A("s_and_b32 s56, s77, 0xffff0000"); A(f"v_writelane_b32 v{vH}, s56, 3")
    A("s_lshl_b32 s78, s78, 16")
    ln_apply(vH, vMb, vDen, vRd, hT[0])
    rbf(vH, vH)
    ln_stats(vXf, vMb, vDen, vRd)
    ln_apply(vH, vMb, vDen, vRd, hT[0])
    rbf(vH, vH)
    A(f"v_mov_b32 v{vGc0}, {f32(GC0)}")
    A(f"v_mov_b32 v{vGc1}, {f32(GC1)}")
    A(f"v_mov_b32 v{vGres}, 0")
    stamp()
    A("s_waitcnt vmcnt(0)")
    stamp()
    for a_i in range(3):
        for i in range(14):
            A(f"v_lshlrev_b32 v{W+a_i*28+2*i}, 16, v{PW+a_i*14+i}")
            A(f"v_and_b32 v{W+a_i*28+2*i+1}, 0xffff0000, v{PW+a_i*14+i}")
    A("s_mov_b32 s57, 0")
    LBL(L("gate"))
    u0, u1, t0, t1, pk, acc = hT[0], hT[1], hT[2], hT[3], hT[4], hT[5]
    A(f"v_readlane_b32 s58, v{vH}, s57")
    A(f"v_mov_b32 v{acc}, 0")
    nop(0)
    for i in range(14):
        w1, b1, w2 = W + 2 * i, W + 28 + 2 * i, W + 56 + 2 * i
        A(f"v_mul_f32 v{u0}, s58, v{w1}")
        A(f"v_mul_f32 v{u1}, s58, v{w1+1}")
        A(f"v_cvt_pk_bf16_f32 v{pk}, v{u0}, v{u1}")
        A(f"v_lshlrev_b32 v{u0}, 16, v{pk}")
        A(f"v_and_b32 v{u1}, 0xffff0000, v{pk}")
        A(f"v_add_f32 v{u0}, v{u0}, v{b1}")
        A(f"v_add_f32 v{u1}, v{u1}, v{b1+1}")
        A(f"v_cvt_pk_bf16_f32 v{pk}, v{u0}, v{u1}")
        A(f"v_lshlrev_b32 v{u0}, 16, v{pk}")
        A(f"v_and_b32 v{u1}, 0xffff0000, v{pk}")
        A(f"v_mul_f32 v{t0}, v{u0}, v{u0}")
        A(f"v_mul_f32 v{t1}, v{u1}, v{u1}")
        A(f"v_fma_f32 v{t0}, v{t0}, v{vGc1}, v{vGc0}")
        A(f"v_fma_f32 v{t1}, v{t1}, v{vGc1}, v{vGc0}")
        A(f"v_mul_f32 v{t0}, v{t0}, v{u0}")
        A(f"v_mul_f32 v{t1}, v{t1}, v{u1}")
        A(f"v_exp_f32 v{t0}, v{t0}")
        A(f"v_exp_f32 v{t1}, v{t1}")
        A(f"v_add_f32 v{t0}, 1.0, v{t0}")
        A(f"v_add_f32 v{t1}, 1.0, v{t1}")
        A(f"v_rcp_f32 v{t0}, v{t0}")
        A(f"v_rcp_f32 v{t1}, v{t1}")
        A(f"v_mul_f32 v{u0}, v{u0}, v{t0}")
        A(f"v_mul_f32 v{u1}, v{u1}, v{t1}")
        A(f"v_cvt_pk_bf16_f32 v{pk}, v{u0}, v{u1}")
        A(f"v_lshlrev_b32 v{u0}, 16, v{pk}")
        A(f"v_and_b32 v{u1}, 0xffff0000, v{pk}")
        A(f"v_fma_f32 v{acc}, v{u0}, v{w2}, v{acc}")
        A(f"v_fma_f32 v{acc}, v{u1}, v{w2+1}, v{acc}")
    wave_reduce(acc, "add", u0)
    rbf(u0, u0)
    A(f"v_add_f32 v{u0}, s78, v{u0}")
    rbf(u0, u0)
    A(f"v_mul_f32 v{t0}, {f32(-math.log2(math.e))}, v{u0}")
    A(f"v_exp_f32 v{t0}, v{t0}")
    nop(0)
    A(f"v_add_f32 v{t0}, 1.0, v{t0}")
    A(f"v_rcp_f32 v{t1}, v{t0}")
    nop(0)
    A(f"v_mul_f32 v{u1}, v{u0}, v{t1}")
    rbf(u1, u1)
    A(f"v_cmp_eq_u32 vcc, s57, v{vLane}")
    nop(1)
    A(f"v_cndmask_b32 v{vGres}, v{vGres}, v{u1}, vcc")
    A("s_add_u32 s57, s57, 1")
    A("s_cmp_lt_u32 s57, 4")
    A(f"s_cbranch_scc1 {L('gate')}")
    A(f"s_setprio {str(hp)[2]}")
    A(f"s_lshl_b32 s56, s{sHW}, 4")
    A(f"v_lshl_add_u32 v{hT[0]}, v{vLane}, 2, s56")
    A("s_mov_b64 exec, 15")
    A(f"ds_write_b32 v{hT[0]}, v{vGres} offset:{L_G}")
    A("s_mov_b64 exec, -1")
    stamp()
    def wo_loads():
        A(f"s_mov_b32 s{sW}, s24"); A(f"s_mov_b32 s{sW+1}, s25")
        A(f"s_mov_b32 s{sW+2}, 0x400000"); A(f"s_mov_b32 s{sW+3}, 0x20000")
        A(f"v_lshlrev_b32 v{vWoff}, 4, v{vC}")
        A(f"v_lshl_add_u32 v{vWoff}, v{vG}, 10, v{vWoff}")
        A(f"s_lshl_b32 s{sOff}, s{sH}, 17")
        A(f"s_lshl_b32 s56, s{sHW}, 8")
        A(f"s_add_u32 s{sOff}, s{sOff}, s56")
        if wrot: A(f"s_lshl_b32 s57, s{sB}, 13")
        for i in range(0 if nowo else 32):
            if wrot: A(f"s_add_u32 s58, s{sOff}, s57")
            if i >= WOT: A(f"s_waitcnt vmcnt({WOT-1})")
            A(f"buffer_load_dwordx4 v[{W+4*i}:{W+4*i+3}], v{vWoff}, s[{sW}:{sW+3}], s{58 if wrot else sOff} offen {wpol}")
            if wrot:
                A("s_add_u32 s57, s57, 4096"); A("s_and_b32 s57, s57, 0xffff")
                if i == 15: A(f"s_add_u32 s{sOff}, s{sOff}, 65536")
            elif i < 31: A(f"s_add_u32 s{sOff}, s{sOff}, 4096")
        A("s_waitcnt vmcnt(0)")
    def ready_poll():
        A(f"s_cmp_lg_u32 s{sHW}, 0")
        A(f"s_cbranch_scc1 {L('cpoll_done')}")
        A(f"s_lshl_b32 s82, s{sB}, 4")
        A(f"v_mov_b32 v{hT[0]}, 0")
        A("s_mov_b32 s57, 0")
        LBL(L("cpoll"))
        A(f"buffer_load_dwordx4 v[{hT[4]}:{hT[7]}], v{hT[0]}, s[{sDbg}:{sDbg+3}], s82 offen sc1")
        A("s_waitcnt vmcnt(0)")
        A(f"v_and_b32 v{hT[4]}, v{hT[4]}, v{hT[5]}")
        A(f"v_and_b32 v{hT[6]}, v{hT[6]}, v{hT[7]}")
        A(f"v_and_b32 v{hT[4]}, v{hT[4]}, v{hT[6]}")
        A("s_add_u32 s57, s57, 1")
        A(f"v_readfirstlane_b32 s56, v{hT[4]}")
        A("s_cmp_ge_u32 s57, 0x400000")
        A(f"s_cbranch_scc1 {L('cpoll_done')}")
        A("s_cmp_lg_u32 s56, 0")
        A(f"s_cbranch_scc1 {L('cpoll_done')}")
        A("s_sleep 32")
        A(f"s_branch {L('cpoll')}")
        LBL(L("cpoll_done"))
    if early: wo_loads()
    elif ctl:
        A(f"s_cmp_eq_u32 s{sHW}, {CK}")
        A(f"s_cbranch_scc1 {L('nowo1')}")
        wo_loads()
        if tv:
            A("s_lshl_b32 s56, s2, 21")
            A(f"s_add_u32 s{sW}, s20, s56"); A(f"s_addc_u32 s{sW+1}, s21, 0")
            A(f"s_mov_b32 s{sW+2}, 0x200000"); A(f"s_mov_b32 s{sW+3}, 0x20000")
            A(f"v_lshlrev_b32 v{hT[0]}, {tv}, v{vLane}")
            A(f"buffer_load_dword v{hT[4]}, v{hT[0]}, s[{sW}:{sW+3}], 0 offen nt")
        LBL(L("nowo1"))
        ctl_loop("k", CK, 4 * (128 - XK), AK)
    elif WOP == 0: wo_loads()
    A("s_waitcnt vmcnt(0) lgkmcnt(0)")
    for r in range(4):
        A(f"v_and_b32 v{vTog+r}, 1, v{vTog+r}")
        A(f"v_xor_b32 v{vTog+r}, 1, v{vTog+r}")
    stamp()
    if early:
        A(f"s_cmp_eq_u32 s{sHW}, {CK}")
        A(f"s_cbranch_scc1 {L('nobar2')}")
    A("s_barrier")
    if early: LBL(L("nobar2"))
    stamp()
    if early: pass
    elif ctl:
        A(f"s_cmp_lg_u32 s{sHW}, {CK}")
        A(f"s_cbranch_scc1 {L('nowo2')}")
        wo_loads()
        LBL(L("nowo2"))
    elif WOP == 1: wo_loads()
    if not xp & 1: ready_poll()
    if tout:
        A(f"s_cmp_lg_u32 s83, s{sH}")
        A(f"s_cbranch_scc1 {L('notout')}")
        A(f"v_lshlrev_b32 v{hT[0]}, 3, v{vLane}")
        A("s_add_u32 s56, s46, s47")
        A("s_mov_b32 exec_hi, 0")
        A(f"buffer_load_dwordx2 v[{hT[4]}:{hT[5]}], v{hT[0]}, s[{sOut}:{sOut+3}], s56 offen")
        A("s_mov_b32 exec_hi, -1")
        A("s_waitcnt vmcnt(0)")
        LBL(L("notout"))
    sReh = 95
    PB = W
    if reh:
        assert early
        PB = 192
        A(f"s_cmp_eq_u32 s{sHW}, 1")
        A(f"s_cselect_b32 s{sReh}, 1, 0")
        LBL(L("tail"))
    A(f"v_and_b32 v{hT[2]}, 3, v{vLane}")
    A(f"v_lshlrev_b32 v{hT[2]}, 4, v{hT[2]}")
    def gate_merge():
        A("s_mov_b32 exec_lo, 0")
        for r in range(4): A(f"v_or_b32 v{vTog+r}, v{vTog+r}, v{hT[4]+r}")
        A("s_mov_b32 exec_lo, -1")
    if not early:
        A(f"ds_read_b128 v[{hT[4]}:{hT[7]}], v{hT[2]} offset:{L_G}")
        A("s_waitcnt lgkmcnt(0)")
        gate_merge()
    if wrot:
        A(f"s_lshl_b32 s56, s{sB}, 1")
        A(f"v_add_u32 v{hT[0]}, s56, v{vC}")
        A(f"v_and_b32 v{hT[0]}, 15, v{hT[0]}")
        A(f"v_lshlrev_b32 v{hT[0]}, 4, v{hT[0]}")
    else: A(f"v_lshlrev_b32 v{hT[0]}, 4, v{vC}")
    A(f"v_lshl_add_u32 v{hT[0]}, v{vG}, 2, v{hT[0]}")
    if reh:
        A(f"s_cmp_eq_u32 s{sReh}, 1")
        A(f"s_cbranch_scc1 {L('nobar3')}")
    if ctl: ctl_loop("v", CV, 4 * (256 - XV), AV)
    A("s_setprio 3")
    stamp()
    A("s_barrier")
    stamp()
    if reh: LBL(L("nobar3"))
    for w in range(4):
        A(f"ds_read2st64_b32 v[{vXf+2*w}:{vXf+2*w+1}], v{hT[0]} offset0:{L_OP//256+2*w} offset1:{L_OP//256+2*w+1}")
    if early:
        A(f"ds_read_b128 v[{hT[4]}:{hT[7]}], v{hT[2]} offset:{L_G}")
        A("s_waitcnt lgkmcnt(1)")
    else: A("s_waitcnt lgkmcnt(0)")
    for k in range(2):
        A(f"v_add_f32 v{vXf+k}, v{vXf+k}, v{vXf+2+k}")
        A(f"v_add_f32 v{vXf+4+k}, v{vXf+4+k}, v{vXf+6+k}")
    for k in range(2):
        A(f"v_add_f32 v{vXf+k}, v{vXf+k}, v{vXf+4+k}")
    for k in range(2):
        A(f"v_cvt_pk_bf16_f32 v{vXs+k}, v{vXf+k}, v{vXf+k}")
    nop(1)
    diag_matvec(vXs, False)
    if early:
        A("s_waitcnt lgkmcnt(0)")
        if reh:
            A(f"s_cmp_eq_u32 s{sReh}, 1")
            A(f"s_cbranch_scc1 {L('nopub0')}")
        gate_merge()
        A(f"s_mov_b32 exec_hi, s{sEH}")
        if not reh: nop(0)
    else:
        A(f"s_mov_b32 exec_hi, s{sEH}")
        nop(6)
    for r in range(4): A(f"v_and_or_b32 v{vAcc+r}, v{vAcc+r}, v{vKeep}, v{vTog+r}")
    A(f"buffer_store_dwordx4 v[{vAcc}:{vAcc+3}], v{vPO}, s[{sWS}:{sWS+3}], 0 offen sc1")
    A("s_mov_b32 exec_hi, -1")
    stamp()
    A(f"s_cmp_lg_u32 s83, s{sH}")
    if reh: LBL(L("nopub"))
    A(f"s_cbranch_scc1 {L('hend')}")
    A(f"v_lshlrev_b32 v{hT[0]}, 4, v{vLane}")
    A("s_mov_b32 s57, 0")
    if reh: A(f"s_lshl_b32 s57, s{sReh}, 22")
    LBL(L("gpoll"))
    A("s_mov_b32 s56, s79")
    A(f"buffer_load_dwordx4 v[{vFin}:{vFin+3}], v{vGo}, s[{sWS}:{sWS+3}], s81 offen sc1")
    for i in range(16):
        A(f"buffer_load_dwordx4 v[{PB+4*i}:{PB+4*i+3}], v{hT[0]}, s[{sWS}:{sWS+3}], s56 offen offset:{(i%4)*1024} sc1")
        if i % 4 == 3 and i < 15: A("s_add_u32 s56, s56, 4096")
    for i in range(16):
        A(f"s_waitcnt vmcnt({15-i})")
        if i == 0:
            for r in range(4): A(f"v_alignbit_b32 v{hT[3]}, v{vFin+r}, v{hT[3]}, 1")
            A(f"v_xor_b32 v{hT[3]}, v{hT[3]}, v{vOld+2}")
            A(f"v_or_b32 v{hT[3]}, 0x0fffffff, v{hT[3]}")
            for r in range(4): A(f"v_and_b32 v{vFin+r}, 0xffff0000, v{vFin+r}")
        for r in range(4):
            n = hT[1] + (4 * i + r) // 32
            A(f"v_alignbit_b32 v{n}, v{PB+4*i+r}, v{n}, 1")
        if i:
            for r in range(4):
                src = f"v{PB+r}" if i == 1 else f"v{vAcc+r}"
                A(f"v_add_f32 v{vAcc+r}, {src}, v{PB+4*i+r}")
    A(f"v_xor_b32 v{hT[1]}, v{hT[1]}, v{vOld}")
    A(f"v_xor_b32 v{hT[2]}, v{hT[2]}, v{vOld+1}")
    A(f"v_and_b32 v{hT[1]}, v{hT[1]}, v{hT[3]}")
    A(f"v_and_b32 v{hT[1]}, v{hT[1]}, v{hT[2]}")
    A(f"v_cmp_ne_u32 vcc, -1, v{hT[1]}")
    A("s_add_u32 s57, s57, 1")
    A("s_cmp_ge_u32 s57, 0x400000")
    A(f"s_cbranch_scc1 {L('gdone')}")
    nop(3)
    A(f"s_cbranch_vccnz {L('gpoll')}")
    LBL(L("gdone"))
    for r in range(4): A(f"v_mov_b32 v{hT[r]}, v{vAcc+r}")
    nop(1)
    for r in range(4): A(f"v_permlane32_swap_b32 v{hT[r]}, v{vAcc+r}")
    for r in range(4): A(f"v_add_f32 v{vAcc+r}, v{vAcc+r}, v{hT[r]}")
    for r in range(4): rbf(vAcc + r, vAcc + r)
    for r in range(4): A(f"v_mul_f32 v{vAcc+r}, v{vAcc+r}, v{vFin+r}")
    for r in range(4): rbf(vAcc + r, vAcc + r)
    A(f"v_lshlrev_b32 v{hT[0]}, 16, v{vXo}")
    A(f"v_and_b32 v{hT[1]}, 0xffff0000, v{vXo}")
    A(f"v_lshlrev_b32 v{hT[2]}, 16, v{vXo+1}")
    A(f"v_and_b32 v{hT[3]}, 0xffff0000, v{vXo+1}")
    for r in range(4): A(f"v_add_f32 v{vAcc+r}, v{vAcc+r}, v{hT[r]}")
    A(f"v_cvt_pk_bf16_f32 v{hT[4]}, v{vAcc}, v{vAcc+1}")
    A(f"v_cvt_pk_bf16_f32 v{hT[5]}, v{vAcc+2}, v{vAcc+3}")
    A(f"v_lshlrev_b32 v{hT[0]}, 3, v{vLane}")
    A("s_add_u32 s56, s46, s47")
    if reh:
        A(f"s_cmp_eq_u32 s{sReh}, 1")
        A(f"s_cbranch_scc1 {L('hend')}")
    A("s_mov_b32 exec_hi, 0")
    A(f"buffer_store_dwordx2 v[{hT[4]}:{hT[5]}], v{hT[0]}, s[{sOut}:{sOut+3}], s56 offen {opol.replace('+', ' ').replace('def', '')}")
    if stamps:
        A("s_waitcnt vmcnt(0)")
        A("s_mov_b64 exec, -1")
        stamp()
        A(f"v_writelane_b32 v{vSt}, s57, 62")
    LBL(L("hend"))
    if reh:
        A(f"s_cmp_eq_u32 s{sReh}, 1")
        A(f"s_mov_b32 s{sReh}, 0")
        A(f"s_cbranch_scc1 {L('tail')}")
    stamp_flush()
    LBL(L("end"))
    A("s_endpgm")
    if reh:
        LBL(L("nopub0"))
        A(f"s_lshr_b32 s56, s{sH}, 2")
        A(f"s_cmp_lg_u32 s56, s{sB}")
        A(f"s_branch {L('nopub')}")
        A("s_endpgm")
    return "\n".join(out)

HEADER = open("cdna_kernels/" + NAME + ".s.ref").read().split("; Override launch geometry")[0]

def full(path, **kw):
    kname = NAME + "_kernel"
    body = gen(**kw)
    s = HEADER
    s += f"; @launch grid=(256,1,1) block=(512,1,1) lds={lds_bytes(**kw)}\n"
    s += '.amdgcn_target "amdgcn-amd-amdhsa--gfx950"\n.text\n'
    s += f".globl {kname}\n.p2align 8\n.type {kname},@function\n{kname}:\n"
    s += body + "\n"
    s += f""".section .rodata,"a"
.p2align 6
.amdhsa_kernel {kname}
  .amdhsa_next_free_vgpr 256
  .amdhsa_next_free_sgpr 96
  .amdhsa_accum_offset 256
  .amdhsa_group_segment_fixed_size 0
  .amdhsa_kernarg_size 104
  .amdhsa_user_sgpr_count 2
  .amdhsa_user_sgpr_kernarg_segment_ptr 1
  .amdhsa_system_sgpr_workgroup_id_x 1
  .amdhsa_float_denorm_mode_32 3
.end_amdhsa_kernel
"""
    open(path, "w").write(s)

if __name__ == "__main__":
    kw = {}
    path = "cdna_kernels/" + NAME + ".s"
    for a in sys.argv[1:]:
        k, v = a.split("=")
        if k == "out": path = v
        else: kw[k] = int(v) if v.lstrip("-").isdigit() else v
    full(path, **kw)
```

```python
import sys, struct
NAME = "recurrent_scan__mha_block_cached__mixer_token_mlp__decode"

def f32(x): return "0x%08x" % struct.unpack("<I", struct.pack("<f", x))[0]

import math
SCALE = f32(128 ** -0.5)
LOG2E = f32(math.log2(math.e))
GC0 = -2.0 * math.sqrt(2.0 / math.pi) * math.log2(math.e)
GC1 = GC0 * 0.044715

L_QP = 0
L_ST = 2048
L_OP = 4096
L_SC = 8192
L_G = 6144
L_PR = 2304
L_FL = 2320
L_CN = 2336
L_HO = 2560
L_STG = L_SC + 32768 + 512
WS_PART = 0
WS_GATE = 512 * 1024
WS_CX = 0x200000
WS_CG = 0x280000
WS_BYTES = 0x300000
def lds_bytes(E=16, **kw): return L_STG + 4 * E * 1024

def gen(W="6", RD=8, PDL=8, E=16, HT=8, HW0=12, WOT=4, WOP=0, MIDA=1, MIDB=1, MIDC=2, kname=NAME + "_kernel", stamps=False, pol="nt", rot=1, sprio=1, wpol="nt", nowo=0, perm=0, pst=0, nowq=0, WE=0, NE=1, vpol=None, alt="", fst=0,
        ctl=0, LV="7:6:5", theta=48, bias=0, gbias=300, gn=4, slp=32, XK=6, XV=6, clamp=64, CK=3, CV=2, AK=12, AV=32, krot=0, NP=3, FB=0, wst=4, tst=1, ginc="16", ksh=0, kmask=255, tout=0, tv=0, dsh=3, early=0, opol="def", reh=0, QD=0, QP=0, QT="2111", xp=0, wrot=0, BX=0, BXL=45, LVE="", RDE=0, hp="3033", pw=0, gn2=0, GX=40, g1=0, GW=1, wrep=0, rpol="def", rmask=31, wpf=0, PFT=2, pfpol="def", qpf=0, c4=0, NS=3, SS=4):
    RG = 8
    wpol = wpol.replace("+", " ").replace("def", "")
    kpol = pol.replace("+", " ").replace("def", "")
    vpol = kpol if vpol is None else vpol.replace("+", " ").replace("def", "")
    pat = [int(c, 16) for c in str(W)]
    assert RD > max(pat) or RD == max(pat) == min(pat)
    assert E % 4 == 0 and E <= 28
    lv = [[int(c, 16) for c in x] for x in LV.split(":")]
    assert RD > max(lv[0])
    R = 4 * RG
    out = []
    def A(s): out.append("    " + s)
    def LBL(s): out.append(s + ":")
    L = lambda s: f"L_{s}"

    vLane = 1
    vMask = [4, 5, 6, 7]
    sWave = 3
    sB, sH = 42, 43
    def nop(n): A(f"s_nop {n}")

    def wave_reduce(v, op, dst, st=60):
        for r in (8, 4, 2, 1):
            nop(1)
            A(f"v_{op}_f32_dpp v{v}, v{v}, v{v} row_ror:{r} row_mask:0xf bank_mask:0xf")
        nop(0)
        for i in range(4):
            A(f"v_readlane_b32 s{st+i}, v{v}, {16*i}")
        nop(0)
        A(f"v_mov_b32 v{dst}, s{st}")
        A(f"v_{op}_f32 v{dst}, s{st+1}, v{dst}")
        A(f"v_{op}_f32 v{dst}, s{st+2}, v{dst}")
        A(f"v_{op}_f32 v{dst}, s{st+3}, v{dst}")

    vSt = 59
    def stamp():
        if not stamps: return
        A("s_memrealtime s[90:91]")
        A("s_waitcnt lgkmcnt(0)")
        A("s_mov_b32 m0, s92")
        A(f"v_writelane_b32 v{vSt}, s90, m0")
        A("s_add_u32 s92, s92, 1")
    def stamp_flush():
        if not stamps: return
        A("s_mov_b64 exec, -1")
        A("s_getreg_b32 s90, hwreg(HW_REG_XCC_ID)")
        A(f"v_writelane_b32 v{vSt}, s90, 63")
        A("s_mov_b32 s84, s40"); A("s_mov_b32 s85, s41"); A("s_mov_b32 s86, 0x1000000"); A("s_mov_b32 s87, 0x20000")
        A(f"s_lshl_b32 s90, s{89 if perm else 2}, 11")
        A("s_add_u32 s90, s90, 0x100000")
        A("v_lshlrev_b32 v58, 2, v0")
        A(f"buffer_store_dword v{vSt}, v58, s[84:87], s90 offen")
    def rbf(dst, src):
        A(f"v_cvt_pk_bf16_f32 v{dst}, v{src}, v{src}")
        A(f"v_and_b32 v{dst}, 0xffff0000, v{dst}")

    A("s_cmp_ge_u32 s2, 256")
    A(f"s_cbranch_scc1 {L('end')}")
    if perm: A("s_mov_b32 s89, s2")
    if perm == 1:
        A("s_lshr_b32 s4, s2, 3"); A("s_and_b32 s2, s2, 7"); A("s_lshl_b32 s2, s2, 5"); A("s_or_b32 s2, s2, s4")
    if perm == 2:
        A("s_and_b32 s4, s2, 7"); A("s_bfe_u32 s5, s2, 0x20003"); A("s_andn2_b32 s2, s2, 31")
        A("s_lshl_b32 s4, s4, 2"); A("s_or_b32 s2, s2, s4"); A("s_or_b32 s2, s2, s5")
    A("s_load_dwordx16 s[16:31], s[0:1], 0")
    A("s_load_dwordx8 s[32:39], s[0:1], 64")
    A("s_load_dwordx2 s[40:41], s[0:1], 96")
    if stamps:
        A("s_mov_b32 s92, 0"); A(f"v_mov_b32 v{vSt}, 0")
        stamp()
    A("v_lshrrev_b32 v2, 6, v0")
    A(f"v_and_b32 v{vLane}, 63, v0")
    A(f"v_readfirstlane_b32 s{sWave}, v2")
    A(f"s_lshr_b32 s{sB}, s2, 5")
    A(f"s_and_b32 s{sH}, s2, 31")
    A(f"v_and_b32 v8, 1, v{vLane}")
    A("v_lshlrev_b32 v8, 4, v8")
    A("v_mov_b32 v9, 0xffff")
    A("v_lshlrev_b32 v8, v8, v9")
    A(f"v_bfe_u32 v9, v{vLane}, 1, 3")
    for m in range(4):
        A(f"v_cmp_eq_u32 vcc, {m}, v9")
        nop(1)
        A(f"v_cndmask_b32 v{vMask[m]}, 0, v8, vcc")
    A(f"s_cmp_ge_u32 s{sWave}, 4")
    A(f"s_cbranch_scc1 {L('helper')}")

    alts = [a.split(":") for a in alt.split(",") if a]
    for i, (lo, hi, kp, vp) in enumerate(alts):
        A(f"s_sub_u32 s55, s2, {lo}")
        A(f"s_cmp_lt_u32 s55, {int(hi) - int(lo)}")
        A(f"s_cbranch_scc1 L_stream{i}")
    i_s0 = len(out)
    vKoff, vVoff = 2, 3
    vM, vLs, vS = 8, 9, 10
    vT = [11, 12, 13, 14, 15]
    D = 16
    O = 20
    vP = [24, 25]
    vS2 = 26
    vLds = 28
    vMg, vRl = 29, 30
    vStg = 31
    BQ = 32
    RING = 64
    TMP = RING + RG * 16
    sK, sV = 44, 48
    sKpos, sVpos, sCnt = 52, 53, 54
    STEP = 16384

    A(f"v_and_b32 v{vKoff}, 3, v{vLane}")
    A(f"v_lshlrev_b32 v{vKoff}, 4, v{vKoff}")
    A(f"v_bfe_u32 v10, v{vLane}, 2, 2")
    A(f"v_lshl_add_u32 v{vKoff}, v10, 8, v{vKoff}")
    A(f"v_lshrrev_b32 v10, 4, v{vLane}")
    A(f"v_lshl_add_u32 v{vKoff}, v10, 6, v{vKoff}")
    A(f"v_lshlrev_b32 v{vVoff}, 4, v{vLane}")
    A("s_lshl_b32 s55, s2, 21")
    A(f"s_mul_i32 s{sKpos}, s{sWave}, {wst * 1024}")
    ginc = [int(x) * 1024 for x in str(ginc).split(".")]
    blocks = set()
    for w_ in range(4):
        p_ = w_ * wst * 1024
        for g_ in range(128):
            for t_ in range(4): blocks.add((p_ + t_ * tst * 1024) // 1024)
            p_ += ginc[g_ % len(ginc)]
    assert blocks == set(range(2048)), "bad block map"
    vKo = [vKoff] * 4; vVo = [vVoff] * 4
    if tst != 1:
        vKo = [vKoff, 52, 53, 54]; vVo = [vVoff, 55, 56, 57]
        for t_ in range(1, 4):
            A(f"v_add_u32 v{vKo[t_]}, {t_ * (tst - 1) * 1024}, v{vKoff}")
            A(f"v_add_u32 v{vVo[t_]}, {t_ * (tst - 1) * 1024}, v{vVoff}")
    if krot:
        A(f"s_lshr_b32 s58, s2, {ksh}")
        A(f"s_and_b32 s58, s58, {kmask}")
        A(f"s_mul_i32 s58, s58, {krot * 16384}")
        A(f"s_add_u32 s{sKpos}, s{sKpos}, s58")
        A(f"s_and_b32 s{sKpos}, s{sKpos}, 0x1fffff")
    A(f"s_mov_b32 s{sVpos}, s{sKpos}")
    A("s_waitcnt lgkmcnt(0)")
    if fst: stamp()
    A(f"s_add_u32 s{sK}, s18, s55"); A(f"s_addc_u32 s{sK+1}, s19, 0")
    A(f"s_mov_b32 s{sK+2}, 0x200000"); A(f"s_mov_b32 s{sK+3}, 0x20000")
    A(f"s_add_u32 s{sV}, s20, s55"); A(f"s_addc_u32 s{sV+1}, s21, 0")
    A(f"s_mov_b32 s{sV+2}, 0x200000"); A(f"s_mov_b32 s{sV+3}, 0x20000")

    st = {"last": -1, "known": -1, "lab": 0, "dyn": False}
    sMode = 57
    vProg, vPrA, vFlA, vFlag = 48, 49, 50, 51
    def group():
        if not st["dyn"]: return
        A("s_waitcnt lgkmcnt(0)")
        A(f"v_readfirstlane_b32 s{sMode}, v{vFlag}")
        A(f"v_add_u32 v{vProg}, 1, v{vProg}")
        A(f"ds_write_b32 v{vPrA}, v{vProg}")
        A(f"ds_read_b32 v{vFlag}, v{vFlA}")
    def wait_vm(n):
        A(f"s_waitcnt vmcnt({n})")
        st["known"] = max(st["known"], st["last"] - n)
    def slot(l):
        if l < R: return RING + l * 4
        if l < R + E: return TMP + ((l - R) % 8) * 4
        return RING + ((l - E) % R) * 4
    def free(l):
        if l < R + E: return True
        return (l - R - E if l < 2 * R + E else l - R) in done
    def need(l):
        assert l <= st["last"]
        if st["known"] < l: wait_vm(st["last"] - l)
    def issue(cap=None):
        l = st["last"] + 1
        if l >= 1024: return
        if cap == "dyn":
            hi, mid, lo = (x[l % len(x)] for x in lv)
            st["lab"] += 1
            lab = f"L_th{st['lab']}@LS@"
            if st["known"] < l - hi: wait_vm(hi - 1)
            if mid < hi:
                A(f"s_cmp_eq_u32 s{sMode}, 0"); A(f"s_cbranch_scc1 {lab}")
                A(f"s_waitcnt vmcnt({mid-1})")
            if lo < mid:
                A(f"s_cmp_lg_u32 s{sMode}, 2"); A(f"s_cbranch_scc1 {lab}")
                A(f"s_waitcnt vmcnt({lo-1})")
            LBL(lab)
        elif cap is not None and st["known"] < l - cap: wait_vm(cap - 1)
        kind = "k" if l < 512 else "v"
        t = l % 4
        srd, pos, vo = (sK, sKpos, vKo[t]) if kind == "k" else (sV, sVpos, vVo[t])
        pol = "@KP@" if kind == "k" else "@VP@"
        if R <= l < R + E:
            if t == 0 or stamps:
                A(f"s_add_u32 m0, s{sStg}, {(l - t - R) * 1024}")
                nop(0)
            A(f"buffer_load_dwordx4 v{vo}, s[{srd}:{srd+3}], s{pos} offen offset:{t*1024} {pol} lds")
        else:
            assert free(l), l
            r = slot(l)
            A(f"buffer_load_dwordx4 v[{r}:{r+3}], v{vo}, s[{srd}:{srd+3}], s{pos} offen offset:{t*1024} {pol}")
        if t == 3:
            A(f"s_add_u32 s{pos}, s{pos}, {ginc[(l // 4) % len(ginc)] & 0xffffffff}")
            if krot: A(f"s_and_b32 s{pos}, s{pos}, 0x1fffff")
        st["last"] = l
        if early and t == 0: group()
    done = set()
    sStg = 56
    A(f"s_mul_i32 s{sStg}, s{sWave}, {E*1024}")
    A(f"s_add_u32 s{sStg}, s{sStg}, {L_STG}")

    if sprio: A(f"s_setprio {sprio}")
    qt = [int(c) for c in str(QT)] if QD else [0, 0, 0, 0]
    n_static = min(R + E, R + E - QD + QP + sum(qt))
    def init_regs():
        A(f"v_mov_b32 v{vM}, 0xff7fffff")
        A(f"v_mov_b32 v{vLs}, 0")
        A(f"v_mov_b32 v{vS}, 0")
        A(f"s_lshl_b32 s55, s{sWave}, 13")
        A(f"s_add_u32 s55, s55, {L_SC}")
        A(f"v_lshl_add_u32 v{vLds}, v{vLane}, 2, s55")
        for r in range(4): A(f"v_mov_b32 v{O+r}, 0")
        A(f"v_add_u32 v{vStg}, s{sStg}, v{vVoff}")
        A(f"v_lshrrev_b32 v{vT[0]}, 2, v{vLane}")
        A(f"v_lshlrev_b32 v{vT[0]}, 5, v{vT[0]}")
        A(f"v_and_b32 v{vT[1]}, 3, v{vLane}")
        if ctl:
            A(f"s_lshl_b32 s55, s{sWave}, 2")
            A(f"s_add_u32 s55, s55, {L_PR}")
            A(f"v_mov_b32 v{vPrA}, s55")
            if pw: A(f"v_add_u32 v{vFlA}, {L_FL - L_PR}, v{vPrA}")
            else: A(f"v_mov_b32 v{vFlA}, {L_FL}")
            A(f"v_mov_b32 v{vProg}, {(n_static + 3) // 4 - RD // 4 if early else NP * RG}")
            A(f"v_mov_b32 v{vFlag}, 1")
            A(f"s_mov_b32 s{sMode}, 1")
            A(f"ds_write_b32 v{vPrA}, v{vProg}")
            A(f"ds_write_b32 v{vFlA}, v{vFlag}")
            if c4: A(f"ds_write_b32 v{vS}, v{vS} offset:{L_CN}")
            A("s_waitcnt lgkmcnt(0)")
    def tick(n, cap):
        for _ in range(n):
            if st["last"] + 1 < R + E: issue(cap)
    for l in range(R + E - QD):
        issue(PDL)
        if l == PDL - 1: init_regs()
        if pst and l % 8 == 7: stamp()
        if fst and (l == 0 or PDL - 1 <= l < PDL + 8): stamp()
    tick(QP, None)
    stamp()
    A("s_barrier")
    stamp()
    for w in range(4):
        for hlf in range(2):
            r = TMP + w * 8 + hlf * 4
            A(f"ds_read_b128 v[{r}:{r+3}], v{vT[0]} offset:{L_QP + w*512 + hlf*16}")
    tick(qt[0], PDL)
    A("s_waitcnt lgkmcnt(0)")
    for e in range(8):
        A(f"v_add_f32 v{TMP+e}, v{TMP+e}, v{TMP+8+e}")
        A(f"v_add_f32 v{TMP+16+e}, v{TMP+16+e}, v{TMP+24+e}")
    tick(qt[1], PDL)
    for e in range(8):
        A(f"v_add_f32 v{TMP+e}, v{TMP+e}, v{TMP+16+e}")
    for m in range(4):
        A(f"v_cvt_pk_bf16_f32 v{TMP+8+m}, v{TMP+2*m}, v{TMP+2*m+1}")
    tick(qt[2], PDL)
    for t in range(4):
        A(f"v_cmp_eq_u32 vcc, {t}, v{vT[1]}")
        nop(1)
        for m in range(4):
            A(f"v_cndmask_b32 v{BQ+4*t+m}, 0, v{TMP+8+m}, vcc")
    tick(qt[3], PDL)
    nop(1)
    assert st["last"] + 1 == n_static

    cnt = {"c": 0, "pend": 0}
    plan = {}
    capo = {"w": 0}
    def capf(): return capo["w"] or ("dyn" if st["dyn"] else pat[(st["last"] + 1) % len(pat)])
    if early: st["dyn"] = True
    def consume(l, mfma):
        cnt["pend"] += plan.get(cnt["c"], 1)
        need(l)
        A(mfma)
        done.add(l)
        while cnt["pend"] and free(st["last"] + 1):
            issue(capf())
            cnt["pend"] -= 1
        cnt["c"] += 1
    def kstep(j):
        n = j % RG
        u = j % 4
        if R <= 4 * j < R + E: A("s_waitcnt lgkmcnt(0)")
        if R <= 4 * j + 4 < R + E:
            need(4 * j + 7)
            for l in range(4 * j + 4, 4 * j + 8):
                r = slot(l)
                A(f"ds_read_b128 v[{r}:{r+3}], v{vStg} offset:{(l-R)*1024}")
        for t in range(4):
            l = 4 * j + t
            r = slot(l)
            c = "0" if t == 0 else f"v[{D}:{D+3}]"
            consume(l, f"v_mfma_f32_16x16x32_bf16 v[{D}:{D+3}], v[{r}:{r+3}], v[{BQ+4*t}:{BQ+4*t+3}], {c}")
            if t == 0 and not early: group()
        nop(7)
        a, b, c = u ^ 1, u ^ 2, u ^ 3
        A(f"v_add_f32_dpp v{vT[0]}, v{D+b}, v{D+u} row_ror:8 row_mask:0xf bank_mask:0xf")
        A(f"v_add_f32_dpp v{vT[1]}, v{D+c}, v{D+a} row_ror:8 row_mask:0xf bank_mask:0xf")
        nop(1)
        A(f"v_add_f32_dpp v{vS}, v{vT[1]}, v{vT[0]} row_ror:{4 if u & 1 else 12} row_mask:0xf bank_mask:{hex(1 << u)}")
        if u == 3:
            rbf(vT[2], vS)
            A(f"v_mul_f32 v{vT[2]}, {SCALE}, v{vT[2]}")
            rbf(vT[2], vT[2])
            A(f"ds_write_b32 v{vLds}, v{vT[2]} offset:{(n//4)*256}")
            A(f"v_max_f32 v{vT[3]}, v{vM}, v{vT[2]}")
            A(f"v_sub_f32 v{vT[0]}, v{vM}, v{vT[3]}")
            A(f"v_sub_f32 v{vT[1]}, v{vT[2]}, v{vT[3]}")
            A(f"v_mul_f32 v{vT[0]}, {LOG2E}, v{vT[0]}")
            A(f"v_mul_f32 v{vT[1]}, {LOG2E}, v{vT[1]}")
            A(f"v_exp_f32 v{vT[0]}, v{vT[0]}")
            A(f"v_exp_f32 v{vT[1]}, v{vT[1]}")
            A(f"v_mov_b32 v{vM}, v{vT[3]}")
            A(f"v_fma_f32 v{vLs}, v{vLs}, v{vT[0]}, v{vT[1]}")
    def spread(c0, n_consume, n_issue, first):
        for c in range(c0, c0 + n_consume): plan[c] = 0
        first = min(first, n_issue)
        for k in range(first): plan[c0 + k] += 1
        rest = n_issue - first
        for k in range(rest):
            c = c0 + first + ((k + 1) * (n_consume - first)) // rest - 1
            plan[c] += 1
    def rel(): return (st["last"] - cnt["c"], st["known"] - cnt["c"])
    def skip_iters(n):
        st["last"] += R * n; st["known"] += R * n
        for l in range(cnt["c"], cnt["c"] + R * n): done.add(l)
        cnt["c"] += R * n

    NIT = 128 // RG
    spread(0, NP * R, NP * R - 1 + RD - st["last"], FB or max(pat))
    for it in range(NP):
        for j in range(it * RG, (it + 1) * RG): kstep(j)
        A(f"v_add_u32 v{vLds}, {RG*64}, v{vLds}")
        stamp()
    assert cnt["pend"] == 0
    assert st["last"] == NP * R - 1 + RD
    if ctl:
        st["dyn"] = True
        pat = lv[0]
    st["known"] = min(st["known"], st["last"] - pat[st["last"] % len(pat)])
    r0 = rel()
    A(f"s_mov_b32 s{sCnt}, {NIT-1-NP}")
    LBL(L("kloop"))
    for j in range(NP * RG, (NP + 1) * RG): kstep(j)
    A(f"v_add_u32 v{vLds}, {RG*64}, v{vLds}")
    stamp()
    A(f"s_sub_u32 s{sCnt}, s{sCnt}, 1")
    A(f"s_cmp_lg_u32 s{sCnt}, 0")
    A(f"s_cbranch_scc1 {L('kloop')}")
    assert rel() == r0, (rel(), r0)
    skip_iters(NIT - 2 - NP)
    for j in range(128 - RG, 128): kstep(j)
    assert st["last"] == 511 + RD
    stamp()
    for _ in range(MIDA): issue()
    A(f"v_subrev_u32 v{vLds}, {8192 - RG*64}, v{vLds}")
    A(f"v_mov_b32 v{vT[0]}, v{vM}")
    wave_reduce(vT[0], "max", vT[2])
    A(f"v_sub_f32 v{vT[0]}, v{vM}, v{vT[2]}")
    A(f"v_mul_f32 v{vT[0]}, {LOG2E}, v{vT[0]}")
    A(f"v_exp_f32 v{vT[0]}, v{vT[0]}")
    nop(0)
    A(f"v_mul_f32 v{vT[0]}, v{vLs}, v{vT[0]}")
    for _ in range(MIDB): issue()
    wave_reduce(vT[0], "add", vT[3])
    A(f"v_mov_b32 v{D}, v{vT[2]}")
    A(f"v_mov_b32 v{D+1}, v{vT[3]}")
    A(f"s_lshl_b32 s55, s{sWave}, 3")
    A(f"v_mov_b32 v{vT[0]}, s55")
    A(f"v_mov_b32 v{vT[1]}, 0")
    A("s_mov_b64 exec, 1")
    A(f"ds_write_b64 v{vT[0]}, v[{D}:{D+1}] offset:{L_ST}")
    A("s_mov_b64 exec, -1")
    A(f"ds_read2st64_b32 v[{vS2}:{vS2+1}], v{vLds} offset0:0 offset1:1")
    for _ in range(MIDC): issue()
    A("s_waitcnt lgkmcnt(0)")
    stamp()
    A("s_barrier")
    stamp()
    A(f"ds_read_b128 v[{TMP}:{TMP+3}], v{vT[1]} offset:{L_ST}")
    A(f"ds_read_b128 v[{TMP+4}:{TMP+7}], v{vT[1]} offset:{L_ST+16}")
    A("s_waitcnt lgkmcnt(0)")
    A(f"v_max3_f32 v{vMg}, v{TMP}, v{TMP+2}, v{TMP+4}")
    A(f"v_max_f32 v{vMg}, v{vMg}, v{TMP+6}")
    for w in range(4):
        A(f"v_sub_f32 v{TMP+2*w}, v{TMP+2*w}, v{vMg}")
        A(f"v_mul_f32 v{TMP+2*w}, {LOG2E}, v{TMP+2*w}")
        A(f"v_exp_f32 v{TMP+2*w}, v{TMP+2*w}")
    nop(0)
    A(f"v_mul_f32 v{vT[0]}, v{TMP}, v{TMP+1}")
    for w in range(1, 4):
        A(f"v_fma_f32 v{vT[0]}, v{TMP+2*w}, v{TMP+2*w+1}, v{vT[0]}")
    A(f"v_rcp_f32 v{vRl}, v{vT[0]}")
    nop(0)
    A(f"v_fma_f32 v{vT[1]}, -v{vT[0]}, v{vRl}, 1.0")
    A(f"v_fma_f32 v{vRl}, v{vT[1]}, v{vRl}, v{vRl}")

    assert RG == 8, "V loop is written for 2 P registers per iteration"
    def vhead():
        stamp()
        A("s_waitcnt lgkmcnt(0)")
        for i in range(2): A(f"v_sub_f32 v{vP[i]}, v{vS2+i}, v{vMg}")
        for i in range(2): A(f"v_mul_f32 v{vP[i]}, {LOG2E}, v{vP[i]}")
        for i in range(2): A(f"v_exp_f32 v{vP[i]}, v{vP[i]}")
        A(f"v_add_u32 v{vLds}, 512, v{vLds}")
        for i in range(2): A(f"v_mul_f32 v{vP[i]}, v{vP[i]}, v{vRl}")
        for i in range(2): A(f"v_cvt_pk_bf16_f32 v{vP[i]}, v{vP[i]}, v{vP[i]}")
        A(f"ds_read2st64_b32 v[{vS2}:{vS2+1}], v{vLds} offset0:0 offset1:1")
        nop(0)
    def vstep(j):
        n = j % RG
        u = j % 4
        p = vP[n // 4]
        for t in range(4):
            for m in range(4):
                A(f"v_and_b32_dpp v{BQ+4*t+m}, v{p}, v{vMask[m]} row_newbcast:{u*4+t} row_mask:0xf bank_mask:0xf")
        for t in range(4):
            l = 4 * j + t
            r = slot(l)
            consume(l, f"v_mfma_f32_16x16x32_bf16 v[{O}:{O+3}], v[{BQ+4*t}:{BQ+4*t+3}], v[{r}:{r+3}], v[{O}:{O+3}]")
            if t == 0 and not early: group()
    spread(512, R, 512 + R - 1 + RD - st["last"], 2)
    vhead()
    for j in range(128, 128 + RG): vstep(j)
    assert st["last"] == 512 + R - 1 + RD
    st["known"] = min(st["known"], st["last"] - pat[st["last"] % len(pat)])
    r0 = rel()
    A(f"s_mov_b32 s{sCnt}, {NIT-1-NE}")
    LBL(L("vloop"))
    vhead()
    for j in range(128 + RG, 128 + 2 * RG): vstep(j)
    A(f"s_sub_u32 s{sCnt}, s{sCnt}, 1")
    A(f"s_cmp_lg_u32 s{sCnt}, 0")
    A(f"s_cbranch_scc1 {L('vloop')}")
    assert rel() == r0, (rel(), r0)
    skip_iters(NIT - 2 - NE)
    if LVE:
        lv = [[int(c, 16) for c in x] for x in LVE.split(":")]
        assert RDE > max(lv[0])
        for k in range(RDE - RD): plan[cnt["c"] + 2 * k] = 2
    if WE:
        capo["w"] = WE
        for k in range(WE + 2 - RD): plan[cnt["c"] + 2 * k] = 2
    for it in range(NE):
        vhead()
        for j in range(256 - (NE - it) * RG, 256 - (NE - it - 1) * RG): vstep(j)
    assert st["last"] == 1023
    A(f"v_and_b32 v{vT[0]}, 15, v{vLane}")
    A(f"v_lshlrev_b32 v{vT[0]}, 5, v{vT[0]}")
    A(f"v_lshrrev_b32 v{vT[1]}, 4, v{vLane}")
    A(f"v_lshl_add_u32 v{vT[0]}, v{vT[1]}, 4, v{vT[0]}")
    A(f"s_lshl_b32 s55, s{sWave}, 9")
    A(f"v_add_u32 v{vT[0]}, s55, v{vT[0]}")
    A("s_mov_b32 exec_hi, 0")
    nop(2)
    A(f"ds_write_b128 v{vT[0]}, v[{O}:{O+3}] offset:{L_OP}")
    A("s_waitcnt lgkmcnt(0)")
    stamp()
    A("s_barrier")
    stamp()
    stamp_flush()
    A("s_endpgm")
    body = out[i_s0:]
    del out[i_s0:]
    fix = lambda p: p.replace("+", " ").replace("def", "")
    out.extend(x.replace("@KP@", kpol).replace("@VP@", vpol).replace("@LS@", "") for x in body)
    for i, (lo, hi, kp, vp) in enumerate(alts):
        LBL(f"L_stream{i}")
        out.extend(x.replace("@KP@", fix(kp)).replace("@VP@", fix(vp)).replace("L_kloop", f"L_kloop{i}").replace("L_vloop", f"L_vloop{i}").replace("@LS@", f"_{i}") for x in body)

    LBL(L("helper"))
    sHW = 44
    sX, sW, sWS, sDbg, sOut = 48, 52, 64, 68, 72
    sOff = 45
    vG, vC = 2, 3
    vX4 = 8
    vXs = 12
    vXf = 16
    vMu, vMb, vDen, vRd = 24, 25, 26, 27
    vA = 28
    vAcc = 36
    hT = [40, 41, 42, 43, 44, 45, 46, 47]
    vWoff = 48
    vPO = 49
    vH = 52
    vOld = 53
    vKeep, vGo = 14, 15
    sEH = 84 if not stamps else 93
    vTog = 8
    vGres = 56
    vGc0, vGc1 = 57, 58
    vFin = 60
    vXo = 50
    W = 64
    PW = 192
    A(f"s_setprio {str(hp)[0]}")
    A(f"s_sub_u32 s{sHW}, s{sWave}, 4")
    if perm: A("s_mov_b32 s2, s89")
    A(f"v_lshrrev_b32 v{vG}, 4, v{vLane}")
    A(f"v_and_b32 v{vC}, 15, v{vLane}")
    A(f"v_lshlrev_b32 v{hT[0]}, 4, v{vLane}")
    A(f"s_lshl_b32 s56, s{sB}, 2")
    if not rot: A("s_mov_b32 s56, 0")
    A(f"v_add_u32 v{hT[1]}, s56, v{vC}")
    A(f"v_add_u32 v{hT[2]}, 16, v{hT[1]}")
    A(f"v_and_b32 v{hT[1]}, 31, v{hT[1]}")
    A(f"v_and_b32 v{hT[2]}, 31, v{hT[2]}")
    A(f"v_lshlrev_b32 v{hT[1]}, 3, v{hT[1]}")
    A(f"v_lshlrev_b32 v{hT[2]}, 3, v{hT[2]}")
    A(f"v_lshl_add_u32 v{hT[1]}, v{vG}, 1, v{hT[1]}")
    A(f"v_lshl_add_u32 v{hT[2]}, v{vG}, 1, v{hT[2]}")
    A(f"s_lshl_b32 s{sOff}, s56, 15")
    A(f"v_lshlrev_b32 v{vWoff}, 4, v{vC}")
    A(f"v_lshl_add_u32 v{vWoff}, v{vG}, 13, v{vWoff}")
    A(f"v_lshlrev_b32 v{vPO}, 5, v{vC}")
    A(f"v_lshl_add_u32 v{vPO}, v{vG}, 4, v{vPO}")
    A(f"s_lshl_b32 s46, s{sB}, 10")
    A(f"s_lshl_b32 s47, s{sHW}, 8")
    A(f"s_lshl_b32 s57, s{sHW}, 20")
    A(f"s_lshl_b32 s56, s{sH}, 8")
    A(f"s_add_u32 s57, s57, s56")
    A("s_waitcnt lgkmcnt(0)")
    A(f"s_add_u32 s{sX}, s16, s46"); A(f"s_addc_u32 s{sX+1}, s17, 0")
    A(f"s_mov_b32 s{sX+2}, 1024"); A(f"s_mov_b32 s{sX+3}, 0x20000")
    A(f"s_add_u32 s{sW}, s22, s57"); A(f"s_addc_u32 s{sW+1}, s23, 0")
    A(f"s_sub_u32 s{sW+2}, 0x100000, s56"); A(f"s_mov_b32 s{sW+3}, 0x20000")
    if nowq == 1: A(f"s_mov_b32 s{sW+2}, 0")
    A(f"buffer_load_dwordx4 v[{vX4}:{vX4+3}], v{hT[0]}, s[{sX}:{sX+3}], 0 offen")
    A(f"buffer_load_ushort v{vXs}, v{hT[1]}, s[{sX}:{sX+3}], s47 offen")
    A(f"buffer_load_ushort v{vXs+1}, v{hT[2]}, s[{sX}:{sX+3}], s47 offen")
    hs = {"last": -1}
    def wq_issue(i):
        assert i == hs["last"] + 1
        if nowq != 2: A(f"buffer_load_dwordx4 v[{W+4*i}:{W+4*i+3}], v{vWoff}, s[{sW}:{sW+3}], s{sOff} offen {wpol}")
        if i < 31:
            A(f"s_add_u32 s{sOff}, s{sOff}, 32768")
            A(f"s_and_b32 s{sOff}, s{sOff}, 0xfffff")
        hs["last"] = i
    if qpf:
        A(f"s_mov_b32 s{sOut}, s22"); A(f"s_mov_b32 s{sOut+1}, s23")
        A(f"s_mov_b32 s{sOut+2}, 0x400000"); A(f"s_mov_b32 s{sOut+3}, 0x20000")
        if perm == 2:
            A("s_lshr_b32 s56, s2, 3"); A("s_lshl_b32 s56, s56, 17")
            A(f"s_lshl_b32 s57, s{sHW}, 15"); A("s_add_u32 s56, s56, s57")
            A(f"s_lshr_b32 s57, s{sH}, 2"); A("s_lshl_b32 s57, s57, 10"); A("s_add_u32 s56, s56, s57")
            for i in range(4):
                A(f"buffer_load_dwordx4 v[{PW+4*i}:{PW+4*i+3}], v{hT[0]}, s[{sOut}:{sOut+3}], s56 offen {pfpol.replace('+', ' ').replace('def', '')}")
                if i < 3: A("s_add_u32 s56, s56, 8192")
        else:
            A("s_lshl_b32 s56, s2, 14")
            A(f"s_lshl_b32 s57, s{sHW}, 12")
            A("s_add_u32 s56, s56, s57")
            for i in range(4):
                A(f"buffer_load_dwordx4 v[{PW+4*i}:{PW+4*i+3}], v{hT[0]}, s[{sOut}:{sOut+3}], s56 offen offset:{i*1024} {pfpol.replace('+', ' ').replace('def', '')}")
    else:
        for i in range(HW0): wq_issue(i)
    A(f"s_lshl_b32 s56, s{sH}, 5")
    A(f"s_lshl_b32 s57, s{sHW}, 3")
    A("s_add_u32 s56, s56, s57")
    A(f"s_add_u32 s58, s{sX}, s56"); A(f"s_addc_u32 s59, s{sX+1}, 0")
    if not g1: A("s_load_dwordx2 s[76:77], s[58:59], 0")
    A("s_load_dword s78, s[34:35], 0")


    cPG, cDf, cSlot, cL4, cGl, cGo, c128, cP, cS, cG, cT, cT2, cZ, cFA, cW, cF = range(236, 252)
    cQ = 232
    sCX, sCG, sPrev, sGn, sCur, sD, sSx, sE, sMd, sDue = 4, 5, 6, 7, 8, 9, 10, 11, 12, 13
    sRng = 94
    sRd = [18, 19, 20, 21, 22, 23, 26, 27]
    def ctl_setup():
        A(f"s_getreg_b32 s{sCX}, hwreg(HW_REG_XCC_ID)")
        A(f"s_and_b32 s{sCX}, s{sCX}, 15")
        A(f"s_mul_i32 s{sCX}, s{sCX}, 4352")
        A(f"s_add_u32 s{sCX}, s{sCX}, {WS_CX}")
        A(f"s_mov_b32 s{sCG}, {WS_CG}")
        A("s_lshr_b32 s56, s2, 3"); A("s_lshl_b32 s56, s56, 2")
        A(f"v_mov_b32 v{cSlot}, s56")
        A(f"v_lshlrev_b32 v{cL4}, 2, v{vLane}")
        A(f"v_and_b32 v{cGl}, 7, v{vLane}")
        A(f"v_mul_u32_u24 v{cGl}, 4352, v{cGl}")
        A("s_and_b32 s56, s2, 7"); A("s_mul_i32 s56, s56, 4352")
        A(f"v_mov_b32 v{cGo}, s56")
        A(f"v_mov_b32 v{c128}, 128")
        for r in (cPG, cDf, cS, cG, cZ, cF): A(f"v_mov_b32 v{r}, 0")
        A(f"v_mov_b32 v{cFA}, {L_FL}")
        A(f"s_mov_b32 s{sGn}, {gn - 1}")
        A(f"s_mov_b32 s{sRng}, 1536")
    def ctl_init():
        A(f"s_cmp_lg_u32 s{sHW}, {CK}")
        A(f"s_cbranch_scc1 {L('cinit_done')}")
        A("s_mov_b64 exec, 1")
        A(f"buffer_store_dword v{cZ}, v{cSlot}, s[{sWS}:{sWS+3}], s{sCX} offen")
        A("s_cmp_ge_u32 s2, 8")
        A(f"s_cbranch_scc1 {L('cinit_done')}")
        A(f"buffer_store_dword v{cZ}, v{c128}, s[{sWS}:{sWS+3}], s{sCX} offen")
        LBL(L("cinit_done"))
        A("s_mov_b64 exec, -1")
    def ctl_loop(tag, wave, lim, adv, bar=False):
        A(f"s_cmp_lg_u32 s{sHW}, {wave}")
        A(f"s_cbranch_scc1 {L('cskip' + tag)}")
        A(f"v_lshlrev_b32 v{cT}, 3, v{vLane}")
        if tag == "v":
            A("s_mov_b64 exec, 0xff")
            A(f"ds_read_b64 v[{cPG}:{cDf}], v{cT} offset:{L_HO}")
        A("s_mov_b64 exec, 1")
        A(f"ds_read_b128 v[{cQ}:{cQ+3}], v{cZ} offset:{L_PR}")
        A("s_waitcnt lgkmcnt(0)")
        A(f"v_add_u32 v{cQ}, v{cQ}, v{cQ+1}"); A(f"v_add3_u32 v{cP}, v{cQ}, v{cQ+2}, v{cQ+3}")
        nop(1)
        A(f"v_readfirstlane_b32 s{sPrev}, v{cP}")
        LBL(L("cloop" + tag))
        A(f"s_sleep {slp}")
        if pw:
            A("s_mov_b64 exec, 15")
            A(f"ds_read_b32 v{cW}, v{cL4} offset:{L_PR}")
        A("s_mov_b64 exec, 1")
        A(f"ds_read_b128 v[{cQ}:{cQ+3}], v{cZ} offset:{L_PR}")
        A("s_waitcnt lgkmcnt(0)")
        A(f"v_add_u32 v{cQ}, v{cQ}, v{cQ+1}"); A(f"v_add3_u32 v{cP}, v{cQ}, v{cQ+2}, v{cQ+3}")
        nop(1)
        A(f"v_readfirstlane_b32 s{sCur}, v{cP}")
        nop(0)
        A(f"s_cmp_ge_u32 s{sCur}, {lim}")
        A(f"s_cbranch_scc1 {L('cexit' + tag)}")
        A(f"buffer_store_dword v{cP}, v{cSlot}, s[{sWS}:{sWS+3}], s{sCX} offen")
        A("s_mov_b32 exec_lo, -1"); A("s_mov_b32 exec_hi, 1")
        A(f"buffer_load_dword v{cS}, v{cL4}, s[{sWS}:{sWS+3}], s{sCX} offen sc1")
        A(f"s_add_u32 s{sGn}, s{sGn}, 1");
        if gn2 and tag == "v":
            A(f"s_cmp_ge_u32 s{sCur}, {4 * (256 - GX)}"); A(f"s_cselect_b32 s56, {gn2}, {gn}")
            A(f"s_cmp_ge_u32 s{sGn}, s56")
        else: A(f"s_cmp_ge_u32 s{sGn}, {gn}")
        A(f"s_cselect_b32 s{sGn}, 0, s{sGn}")
        A("s_cmp_ge_u32 s2, 8")
        A(f"s_cbranch_scc1 {L('cn1' + tag)}")
        A("s_mov_b64 exec, 0xff")
        A(f"buffer_load_dword v{cG}, v{cGl}, s[{sWS}:{sWS+3}], s{sCG} offen sc1")
        LBL(L("cn1" + tag))
        A("s_mov_b64 exec, -1")
        A(f"s_sub_i32 s56, s{sCur}, {clamp}"); A(f"s_add_i32 s57, s{sCur}, {clamp}")
        A(f"v_mov_b32 v{cT}, s57")
        if pw:
            A(f"v_lshlrev_b32 v{cW}, 2, v{cW}")
            A(f"v_subrev_u32 v{cW}, s{sCur}, v{cW}")
            A(f"v_ashrrev_i32 v{cF}, 1, v{cF}")
            A(f"v_add_u32 v{cF}, v{cF}, v{cW}")
            A(f"v_mul_i32_i24 v{cW}, {pw}, v{cF}")
        A("s_waitcnt vmcnt(0)")
        A(f"v_readlane_b32 s{sD}, v{cS}, 32")
        A(f"v_med3_i32 v{cS}, v{cS}, s56, v{cT}")
        for r in (8, 4, 2, 1):
            nop(1); A(f"v_add_u32_dpp v{cS}, v{cS}, v{cS} row_ror:{r} row_mask:0xf bank_mask:0xf")
        nop(0)
        A(f"v_readlane_b32 s{sSx}, v{cS}, 0"); A(f"v_readlane_b32 s56, v{cS}, 16")
        nop(3)
        A(f"s_add_u32 s{sSx}, s{sSx}, s56")
        A("s_cmp_ge_u32 s2, 8")
        A(f"s_cbranch_scc1 {L('cn2' + tag)}")
        A(f"v_cmp_ne_u32 vcc, v{cG}, v{cPG}")
        A(f"v_sub_u32 v{cT}, s{sSx}, v{cG}")
        A(f"v_subrev_u32 v{cT}, {gbias}, v{cT}")
        A(f"v_add_u32 v{cT2}, 768, v{cT}")
        A(f"v_cmp_gt_u32 s[56:57], s{sRng}, v{cT2}")
        A("s_and_b64 vcc, vcc, s[56:57]")
        A(f"v_cndmask_b32 v{cDf}, v{cDf}, v{cT}, vcc")
        A(f"v_mov_b32 v{cPG}, v{cG}")
        A(f"v_writelane_b32 v{cDf}, 0, s2")
        nop(0)
        for i in range(8): A(f"v_readlane_b32 s{sRd[i]}, v{cDf}, {i}")
        nop(3)
        for i in range(1, 8): A(f"s_add_u32 s{sRd[0]}, s{sRd[0]}, s{sRd[i]}")
        A(f"s_ashr_i32 s{sD}, s{sRd[0]}, {dsh}")
        A("s_mov_b64 exec, 1")
        A(f"v_mov_b32 v{cT}, s{sSx}"); A(f"v_mov_b32 v{cT2}, s{sD}")
        A(f"buffer_store_dword v{cT2}, v{c128}, s[{sWS}:{sWS+3}], s{sCX} offen")
        A(f"s_cmp_lg_u32 s{sGn}, 0")
        A(f"s_cbranch_scc1 {L('cn2' + tag)}")
        A(f"buffer_store_dword v{cT}, v{cGo}, s[{sWS}:{sWS+3}], s{sCG} offen sc1")
        LBL(L("cn2" + tag))
        A(f"s_add_u32 s{sE}, s{sCur}, s{sPrev}"); A(f"s_lshl_b32 s{sE}, s{sE}, 4")
        A(f"s_sub_i32 s{sE}, s{sE}, s{sSx}")
        A(f"s_add_i32 s{sE}, s{sE}, s{sD}")
        A(f"s_mov_b32 s{sPrev}, s{sCur}")
        if BX and tag == "k":
            A(f"s_cmp_lt_u32 s{sCur}, {4 * BXL}"); A(f"s_cselect_b32 s56, {BX}, 0")
            A(f"s_sub_i32 s{sE}, s{sE}, s56")
        A(f"s_mov_b32 s{sMd}, 1")
        A(f"s_cmp_gt_i32 s{sE}, {bias+theta}"); A(f"s_cselect_b32 s{sMd}, 2, s{sMd}")
        A(f"s_cmp_lt_i32 s{sE}, {bias-theta}"); A(f"s_cselect_b32 s{sMd}, 0, s{sMd}")
        if pw:
            A("s_mov_b64 exec, 15")
            A(f"v_add_u32 v{cW}, s{sE}, v{cW}")
            A(f"v_cmp_lt_i32 vcc, {bias+theta}, v{cW}")
            A(f"v_mov_b32 v{cT}, 1")
            nop(0)
            A(f"v_cndmask_b32 v{cT}, v{cT}, 2, vcc")
            A(f"v_cmp_gt_i32 vcc, {bias-theta}, v{cW}")
            nop(1)
            A(f"v_cndmask_b32 v{cT}, v{cT}, 0, vcc")
            A(f"ds_write_b32 v{cL4}, v{cT} offset:{L_FL}")
        else:
            A("s_mov_b64 exec, 1")
            A(f"v_mov_b32 v{cT}, s{sMd}")
            A(f"ds_write_b32 v{cFA}, v{cT}")
        if stamps:
            A("s_add_u32 s14, s14, 1")
            A(f"s_cmp_eq_u32 s{sMd}, 0"); A("s_addc_u32 s15, s15, 0")
            A(f"s_cmp_eq_u32 s{sMd}, 2"); A("s_addc_u32 s13, s13, 0")
        A(f"s_branch {L('cloop' + tag)}")
        LBL(L("cexit" + tag))
        A(f"v_add_u32 v{cP}, {adv}, v{cP}")
        A(f"buffer_store_dword v{cP}, v{cSlot}, s[{sWS}:{sWS+3}], s{sCX} offen")
        if tag == "k":
            A("s_mov_b64 exec, 0xff")
            A(f"v_lshlrev_b32 v{cT}, 3, v{vLane}")
            A(f"ds_write_b64 v{cT}, v[{cPG}:{cDf}] offset:{L_HO}")
        A("s_mov_b64 exec, -1")
        if stamps:
            A(f"v_writelane_b32 v{vSt}, s14, 56"); A(f"v_writelane_b32 v{vSt}, s15, 57"); A(f"v_writelane_b32 v{vSt}, s13, 58")
        if bar:
            A("s_waitcnt lgkmcnt(0)")
            A("s_barrier")
        LBL(L("cskip" + tag))

    def unpack8(src, dst):
        for i in range(4):
            A(f"v_lshlrev_b32 v{dst+2*i}, 16, v{src+i}")
            A(f"v_and_b32 v{dst+2*i+1}, 0xffff0000, v{src+i}")
    def ln_stats(xf, mb, den, rd):
        t0, t1, t2 = hT[0], hT[1], hT[2]
        A(f"v_add_f32 v{t0}, v{xf}, v{xf+1}")
        A(f"v_add_f32 v{t1}, v{xf+2}, v{xf+3}")
        A(f"v_add_f32 v{t2}, v{xf+4}, v{xf+5}")
        A(f"v_add_f32 v{t0}, v{t0}, v{t1}")
        A(f"v_add_f32 v{t1}, v{xf+6}, v{xf+7}")
        A(f"v_add_f32 v{t1}, v{t1}, v{t2}")
        A(f"v_add_f32 v{t0}, v{t0}, v{t1}")
        wave_reduce(t0, "add", vMu)
        A(f"v_mul_f32 v{vMu}, {f32(1/512)}, v{vMu}")
        A(f"v_sub_f32 v{t1}, v{xf}, v{vMu}")
        A(f"v_mul_f32 v{t0}, v{t1}, v{t1}")
        for i in range(1, 8):
            A(f"v_sub_f32 v{t1}, v{xf+i}, v{vMu}")
            A(f"v_fma_f32 v{t0}, v{t1}, v{t1}, v{t0}")
        wave_reduce(t0, "add", den)
        A(f"v_mul_f32 v{den}, {f32(1/512)}, v{den}")
        rbf(mb, vMu)
        rbf(den, den)
        A(f"v_add_f32 v{den}, {f32(1e-5)}, v{den}")
        rbf(den, den)
        A(f"v_sqrt_f32 v{den}, v{den}")
        nop(0)
        rbf(den, den)
        A(f"v_rcp_f32 v{rd}, v{den}")
        nop(0)
    def ln_apply(v, mb, den, rd, tmp):
        A(f"v_sub_f32 v{v}, v{v}, v{mb}")
        rbf(v, v)
        A(f"v_mul_f32 v{tmp}, v{v}, v{rd}")
        A(f"v_fma_f32 v{v}, -v{tmp}, v{den}, v{v}")
        A(f"v_fma_f32 v{v}, v{v}, v{rd}, v{tmp}")

    stamp()
    A(f"s_waitcnt vmcnt({0 if qpf == 1 else 6 if qpf else HW0+2})")
    stamp()
    if qpf == 1:
        for i in range(HW0): wq_issue(i)
    unpack8(vX4, vXf)
    ln_stats(vXf, vMb, vDen, vRd)
    if qpf == 2:
        A("s_waitcnt vmcnt(0)")
        for i in range(HW0): wq_issue(i)
    A(f"s_waitcnt vmcnt({HW0})")
    for k in range(2):
        A(f"v_lshlrev_b32 v{vXs+k}, 16, v{vXs+k}")
        ln_apply(vXs + k, vMb, vDen, vRd, hT[0])
        A(f"v_cvt_pk_bf16_f32 v{vXs+k}, v{vXs+k}, v{vXs+k}")
    nop(1)
    def diag_matvec(src, waits):
        def mkA(i):
            for m in range(4):
                A(f"v_and_b32_dpp v{vA+4*(i&1)+m}, v{src+(i>>4)}, v{vMask[m]} row_newbcast:{i&15} row_mask:0xf bank_mask:0xf")
        mkA(0)
        for i in range(32):
            if i < 31: mkA(i + 1)
            else: nop(1)
            if waits:
                A(f"s_waitcnt vmcnt({hs['last']-i})")
                if i + HT > hs["last"] and i + HT < 32: wq_issue(i + HT)
            c = "0" if i == 0 else f"v[{vAcc}:{vAcc+3}]"
            a = vA + 4 * (i & 1)
            A(f"v_mfma_f32_16x16x32_bf16 v[{vAcc}:{vAcc+3}], v[{a}:{a+3}], v[{W+4*i}:{W+4*i+3}], {c}")
    stamp()
    diag_matvec(vXs, True)
    stamp()
    A(f"s_lshl_b32 s56, s{sHW}, 9")
    A(f"v_add_u32 v{hT[0]}, s56, v{vPO}")
    A("s_mov_b32 exec_hi, 0")
    nop(5)
    A(f"ds_write_b128 v{hT[0]}, v[{vAcc}:{vAcc+3}] offset:{L_QP}")
    A("s_mov_b32 exec_hi, -1")
    A("s_waitcnt lgkmcnt(0)")
    A("s_barrier")
    stamp()
    if str(hp)[3] != str(hp)[0]: A(f"s_setprio {str(hp)[3]}")
    def poll_issue(r):
        A("s_mov_b32 s56, s79")
        for i in range(4):
            A(f"buffer_load_dwordx4 v[{r+4*i}:{r+4*i+3}], v{vGo}, s[{sWS}:{sWS+3}], s56 offen sc1")
            if i < 3: A("s_add_u32 s56, s56, 4096")
    A(f"s_mov_b32 s{sWS}, s40"); A(f"s_mov_b32 s{sWS+1}, s41")
    A(f"s_mov_b32 s{sWS+2}, {WS_BYTES}"); A(f"s_mov_b32 s{sWS+3}, 0x20000")
    A(f"s_mov_b32 s{sDbg}, s38"); A(f"s_mov_b32 s{sDbg+1}, s39")
    A(f"s_mov_b32 s{sDbg+2}, 256"); A(f"s_mov_b32 s{sDbg+3}, 0x20000")
    A(f"s_mov_b32 s{sOut}, s36"); A(f"s_mov_b32 s{sOut+1}, s37")
    A(f"s_mov_b32 s{sOut+2}, 8192"); A(f"s_mov_b32 s{sOut+3}, 0x20000")
    A(f"s_lshl_b32 s79, s{sB}, 2")
    A(f"s_add_u32 s79, s79, s{sHW}")
    A("s_lshl_b32 s79, s79, 14")
    A(f"s_lshl_b32 s80, s{sH}, 9")
    A("s_add_u32 s80, s80, s79")
    if c4:
        A(f"v_add_u32 v{vPO}, s80, v{vPO}")
    else:
        A(f"s_lshl_b32 s81, s{sB}, 11")
        A(f"s_add_u32 s81, s81, {WS_GATE}")
        A(f"s_lshl_b32 s56, s{sH}, 6")
        A("s_add_u32 s56, s56, s81")
        A("s_sub_u32 s56, s56, 512")
        A(f"v_add_u32 v{vPO}, s80, v{vPO}")
        A(f"v_mov_b32 v{vKeep}, -2")
        A("s_mov_b32 exec_lo, 0")
        A(f"v_lshl_add_u32 v{vPO}, v{vLane}, 4, s56")
        A(f"v_mov_b32 v{vKeep}, 0")
        A("s_mov_b32 exec_lo, -1")
        A(f"s_lshr_b32 s56, s{sH}, 3")
        A(f"s_cmp_eq_u32 s56, s{sHW}")
        A(f"s_cselect_b32 s{sEH}, 15, 0")
    if ctl:
        ctl_setup()
        ctl_init()
        if stamps:
            for r in (14, 15, 13): A(f"s_mov_b32 s{r}, 0")
    if c4:
        A("s_mov_b32 exec_hi, 0")
        A(f"buffer_load_dwordx4 v[{vTog}:{vTog+3}], v{vPO}, s[{sWS}:{sWS+3}], 0 offen sc1")
        A("s_mov_b32 exec_hi, -1")
        A(f"s_lshr_b32 s83, s{sH}, 2")
        A(f"s_lshl_b32 s79, s{sH}, 14")
        A(f"s_lshl_b32 s56, s{sHW}, 7")
        A("s_add_u32 s79, s79, s56")
        A(f"s_and_b32 s81, s{sH}, 3")
        A("s_lshl_b32 s81, s81, 8")
        A(f"s_lshl_b32 s56, s{sHW}, 6")
        A("s_add_u32 s81, s81, s56")
        A(f"v_and_b32 v{hT[2]}, 7, v{vLane}")
        A(f"v_lshrrev_b32 v{hT[3]}, 3, v{vLane}")
        A(f"v_lshlrev_b32 v{vGo}, 4, v{hT[2]}")
        A(f"v_lshl_add_u32 v{vGo}, v{hT[3]}, 9, v{vGo}")
        A(f"v_lshrrev_b32 v{hT[3]}, 5, v{vLane}")
        A(f"v_bfe_u32 v{hT[4]}, v{vLane}, 4, 1")
        A(f"v_lshl_add_u32 v{hT[3]}, v{hT[4]}, 1, v{hT[3]}")
        A(f"v_lshl_add_u32 v{hT[3]}, v{hT[2]}, 2, v{hT[3]}")
        A(f"v_lshlrev_b32 v{vKeep}, 1, v{hT[3]}")
        A(f"s_cmp_lg_u32 s83, s{sB}")
        A(f"s_cbranch_scc1 {L('noold')}")
        poll_issue(W)
        A(f"buffer_load_ushort v{vXo}, v{vKeep}, s[{sX}:{sX+3}], s81 offen")
        A("s_waitcnt vmcnt(0)")
        for i in range(16): A(f"v_alignbit_b32 v{vOld}, v{W+i}, v{vOld}, 1")
        A(f"v_lshlrev_b32 v{vXo}, 16, v{vXo}")
        A(f"v_mov_b32 v{hT[0]}, 0")
        A(f"v_mov_b32 v{hT[1]}, 1")
        A("s_mov_b64 exec, 1")
        A(f"ds_add_rtn_u32 v{hT[2]}, v{hT[0]}, v{hT[1]} offset:{L_CN}")
        A(f"s_lshl_b32 s56, s{sH}, 2")
        A("s_waitcnt lgkmcnt(0)")
        A(f"v_readfirstlane_b32 s57, v{hT[2]}")
        A("s_cmp_lg_u32 s57, 3")
        A(f"s_cbranch_scc1 {L('noflag')}")
        A(f"buffer_store_dword v{hT[1]}, v{hT[0]}, s[{sDbg}:{sDbg+3}], s56 offen sc1")
        LBL(L("noflag"))
        A("s_mov_b64 exec, -1")
    else:
        A(f"s_mov_b32 exec_hi, s{sEH}")
        A(f"buffer_load_dwordx4 v[{vTog}:{vTog+3}], v{vPO}, s[{sWS}:{sWS+3}], 0 offen sc1")
        A("s_mov_b32 exec_hi, -1")
        A(f"s_lshl_b32 s82, s{sB}, 2")
        A(f"s_add_u32 s83, s82, s{sHW}")
        A(f"s_lshl_b32 s56, s{sHW}, 9")
        A("s_add_u32 s81, s81, s56")
        A(f"v_and_b32 v{hT[2]}, 31, v{vLane}")
        A(f"v_lshlrev_b32 v{vGo}, 4, v{hT[2]}")
        A(f"s_cmp_lg_u32 s83, s{sH}")
        A(f"s_cbranch_scc1 {L('noold')}")
        A(f"v_lshlrev_b32 v{hT[0]}, 4, v{vLane}")
        A(f"v_lshlrev_b32 v{hT[3]}, 3, v{hT[2]}")
        A("s_mov_b32 s56, s79")
        for i in range(16):
            A(f"buffer_load_dwordx4 v[{W+4*i}:{W+4*i+3}], v{hT[0]}, s[{sWS}:{sWS+3}], s56 offen offset:{(i%4)*1024} sc1")
            if i % 4 == 3 and i < 15: A("s_add_u32 s56, s56, 4096")
        A(f"buffer_load_dwordx4 v[{vFin}:{vFin+3}], v{vGo}, s[{sWS}:{sWS+3}], s81 offen sc1")
        A(f"buffer_load_dwordx2 v[{vXo}:{vXo+1}], v{hT[3]}, s[{sX}:{sX+3}], s47 offen")
        A("s_waitcnt vmcnt(0)")
        for i in range(64):
            o = vOld + i // 32
            A(f"v_alignbit_b32 v{o}, v{W+i}, v{o}, 1")
        for r in range(4): A(f"v_alignbit_b32 v{vOld+2}, v{vFin+r}, v{vOld+2}, 1")
        A(f"v_mov_b32 v{hT[0]}, 0")
        A(f"v_mov_b32 v{hT[1]}, 1")
        A(f"s_lshl_b32 s56, s83, 2")
        A("s_mov_b64 exec, 1")
        if not xp & 1: A(f"buffer_store_dword v{hT[1]}, v{hT[0]}, s[{sDbg}:{sDbg+3}], s56 offen sc1")
        A("s_mov_b64 exec, -1")
    LBL(L("noold"))
    if wpf:
        A(f"s_mov_b32 s{sW}, s24"); A(f"s_mov_b32 s{sW+1}, s25")
        A(f"s_mov_b32 s{sW+2}, 0x400000"); A(f"s_mov_b32 s{sW+3}, 0x20000")
        A(f"v_lshlrev_b32 v{hT[7]}, 4, v{vLane}")
        A(f"s_lshl_b32 s56, s{sH}, 17")
        A(f"s_lshl_b32 s57, s{sB}, 14")
        A("s_add_u32 s56, s56, s57")
        pp = pfpol.replace("+", " ").replace("def", "")
        if wpf == 1:
            A(f"s_lshl_b32 s57, s{sHW}, 12")
            A("s_add_u32 s56, s56, s57")
            for i in range(4):
                if i >= PFT: A(f"s_waitcnt vmcnt({PFT-1})")
                A(f"buffer_load_dwordx4 v[{W+4*i}:{W+4*i+3}], v{hT[7]}, s[{sW}:{sW+3}], s56 offen offset:{i*1024} {pp}")
            A("s_waitcnt vmcnt(0)")
        else:
            A(f"s_cmp_lg_u32 s{sHW}, 0")
            A(f"s_cbranch_scc1 {L('nopf')}")
            for i in range(16):
                if i >= PFT: A(f"s_waitcnt vmcnt({PFT-1})")
                A(f"buffer_load_dwordx4 v[{W+4*i}:{W+4*i+3}], v{hT[7]}, s[{sW}:{sW+3}], s56 offen offset:{(i%4)*1024} {pp}")
                if i % 4 == 3: A("s_add_u32 s56, s56, 4096")
            A("s_waitcnt vmcnt(0)")
            LBL(L("nopf"))
    if early:
        ctl_loop("k", CK, 4 * (128 - XK), AK, bar=True)
    if c4:
        A(f"s_cmp_lg_u32 s83, s{sB}")
        A(f"s_cbranch_scc1 {L('nogate')}")
    elif g1:
        A(f"s_cmp_lg_u32 s{sHW}, {GW}")
        A(f"s_cbranch_scc1 {L('nogate')}")
        A(f"v_lshlrev_b32 v{hT[7]}, 1, v{vC}")
        A(f"s_lshl_b32 s56, s{sH}, 5")
        A(f"buffer_load_ushort v{vH}, v{hT[7]}, s[{sX}:{sX+3}], s56 offen")
    A(f"v_lshlrev_b32 v{hT[7]}, 3, v{vLane}")
    for a_i, ptr in enumerate((28, 30, 32)):
        A(f"s_mov_b32 s{sW}, s{ptr}"); A(f"s_mov_b32 s{sW+1}, s{ptr+1}")
        A(f"s_mov_b32 s{sW+2}, 3584"); A(f"s_mov_b32 s{sW+3}, 0x20000")
        for i in range(0 if xp & 4 else 7):
            r = PW + a_i * 14 + 2 * i
            A(f"buffer_load_dwordx2 v[{r}:{r+1}], v{hT[7]}, s[{sW}:{sW+3}], 0 offen offset:{i*512}")
    stamp()
    A(f"s_setprio {str(hp)[1]}")
    for i in range(8):
        ln_apply(vXf + i, vMb, vDen, vRd, hT[0])
        rbf(vXf + i, vXf + i)
    if c4: A(f"v_mov_b32 v{vH}, v{vXo}")
    elif g1:
        A("s_waitcnt vmcnt(21)")
        A(f"v_lshlrev_b32 v{vH}, 16, v{vH}")
    else:
        A("s_lshl_b32 s56, s76, 16"); A(f"v_mov_b32 v{vH}, s56")
        A("s_and_b32 s56, s76, 0xffff0000"); A(f"v_writelane_b32 v{vH}, s56, 1")
        A("s_lshl_b32 s56, s77, 16"); A(f"v_writelane_b32 v{vH}, s56, 2")
        A("s_and_b32 s56, s77, 0xffff0000"); A(f"v_writelane_b32 v{vH}, s56, 3")
    A("s_lshl_b32 s78, s78, 16")
    ln_apply(vH, vMb, vDen, vRd, hT[0])
    rbf(vH, vH)
    ln_stats(vXf, vMb, vDen, vRd)
    ln_apply(vH, vMb, vDen, vRd, hT[0])
    rbf(vH, vH)
    A(f"v_mov_b32 v{vGc0}, {f32(GC0)}")
    A(f"v_mov_b32 v{vGc1}, {f32(GC1)}")
    A(f"v_mov_b32 v{vGres}, 0")
    stamp()
    A("s_waitcnt vmcnt(0)")
    stamp()
    for a_i in range(3):
        for i in range(14):
            A(f"v_lshlrev_b32 v{W+a_i*28+2*i}, 16, v{PW+a_i*14+i}")
            A(f"v_and_b32 v{W+a_i*28+2*i+1}, 0xffff0000, v{PW+a_i*14+i}")
    A("s_mov_b32 s57, 0")
    LBL(L("gate"))
    u0, u1, t0, t1, pk, acc = hT[0], hT[1], hT[2], hT[3], hT[4], hT[5]
    A(f"v_readlane_b32 s58, v{vH}, s57")
    A(f"v_mov_b32 v{acc}, 0")
    nop(0)
    for i in range(14):
        w1, b1, w2 = W + 2 * i, W + 28 + 2 * i, W + 56 + 2 * i
        A(f"v_mul_f32 v{u0}, s58, v{w1}")
        A(f"v_mul_f32 v{u1}, s58, v{w1+1}")
        A(f"v_cvt_pk_bf16_f32 v{pk}, v{u0}, v{u1}")
        A(f"v_lshlrev_b32 v{u0}, 16, v{pk}")
        A(f"v_and_b32 v{u1}, 0xffff0000, v{pk}")
        A(f"v_add_f32 v{u0}, v{u0}, v{b1}")
        A(f"v_add_f32 v{u1}, v{u1}, v{b1+1}")
        A(f"v_cvt_pk_bf16_f32 v{pk}, v{u0}, v{u1}")
        A(f"v_lshlrev_b32 v{u0}, 16, v{pk}")
        A(f"v_and_b32 v{u1}, 0xffff0000, v{pk}")
        A(f"v_mul_f32 v{t0}, v{u0}, v{u0}")
        A(f"v_mul_f32 v{t1}, v{u1}, v{u1}")
        A(f"v_fma_f32 v{t0}, v{t0}, v{vGc1}, v{vGc0}")
        A(f"v_fma_f32 v{t1}, v{t1}, v{vGc1}, v{vGc0}")
        A(f"v_mul_f32 v{t0}, v{t0}, v{u0}")
        A(f"v_mul_f32 v{t1}, v{t1}, v{u1}")
        A(f"v_exp_f32 v{t0}, v{t0}")
        A(f"v_exp_f32 v{t1}, v{t1}")
        A(f"v_add_f32 v{t0}, 1.0, v{t0}")
        A(f"v_add_f32 v{t1}, 1.0, v{t1}")
        A(f"v_rcp_f32 v{t0}, v{t0}")
        A(f"v_rcp_f32 v{t1}, v{t1}")
        A(f"v_mul_f32 v{u0}, v{u0}, v{t0}")
        A(f"v_mul_f32 v{u1}, v{u1}, v{t1}")
        A(f"v_cvt_pk_bf16_f32 v{pk}, v{u0}, v{u1}")
        A(f"v_lshlrev_b32 v{u0}, 16, v{pk}")
        A(f"v_and_b32 v{u1}, 0xffff0000, v{pk}")
        A(f"v_fma_f32 v{acc}, v{u0}, v{w2}, v{acc}")
        A(f"v_fma_f32 v{acc}, v{u1}, v{w2+1}, v{acc}")
    wave_reduce(acc, "add", u0)
    rbf(u0, u0)
    A(f"v_add_f32 v{u0}, s78, v{u0}")
    rbf(u0, u0)
    A(f"v_mul_f32 v{t0}, {f32(-math.log2(math.e))}, v{u0}")
    A(f"v_exp_f32 v{t0}, v{t0}")
    nop(0)
    A(f"v_add_f32 v{t0}, 1.0, v{t0}")
    A(f"v_rcp_f32 v{t1}, v{t0}")
    nop(0)
    A(f"v_mul_f32 v{u1}, v{u0}, v{t1}")
    rbf(u1, u1)
    A(f"v_cmp_eq_u32 vcc, s57, v{vLane}")
    nop(1)
    A(f"v_cndmask_b32 v{vGres}, v{vGres}, v{u1}, vcc")
    A("s_add_u32 s57, s57, 1")
    if c4:
        A("s_and_b32 s56, s57, 8"); A("s_add_u32 s57, s57, s56")
    A(f"s_cmp_lt_u32 s57, {64 if c4 else 16 if g1 else 4}")
    A(f"s_cbranch_scc1 {L('gate')}")
    A(f"s_setprio {str(hp)[2]}")
    if c4: pass
    elif g1:
        A(f"v_lshlrev_b32 v{hT[0]}, 2, v{vLane}")
        A("s_mov_b64 exec, 0xffff")
    else:
        A(f"s_lshl_b32 s56, s{sHW}, 4")
        A(f"v_lshl_add_u32 v{hT[0]}, v{vLane}, 2, s56")
        A("s_mov_b64 exec, 15")
    if not c4:
        A(f"ds_write_b32 v{hT[0]}, v{vGres} offset:{L_G}")
        A("s_mov_b64 exec, -1")
    if g1:
        LBL(L("nogate"))
        if stamps: A("s_mov_b32 s92, 9")
    stamp()
    def wo_loads():
        wo_loads1(wpol)
        if wrep:
            A(f"s_mov_b32 s59, {wrep}")
            LBL(L("wrep"))
            wo_loads1(rpol.replace("+", " ").replace("def", ""), rmask)
            A("s_sub_u32 s59, s59, 1"); A("s_cmp_lg_u32 s59, 0"); A(f"s_cbranch_scc1 {L('wrep')}")
            wo_loads1(wpol)
    def wo_loads1(wpol, rmask=31):
        A(f"s_mov_b32 s{sW}, s24"); A(f"s_mov_b32 s{sW+1}, s25")
        A(f"s_mov_b32 s{sW+2}, 0x400000"); A(f"s_mov_b32 s{sW+3}, 0x20000")
        A(f"v_lshlrev_b32 v{vWoff}, 4, v{vC}")
        A(f"v_lshl_add_u32 v{vWoff}, v{vG}, 10, v{vWoff}")
        A(f"s_lshl_b32 s{sOff}, s{sH}, 17")
        A(f"s_lshl_b32 s56, s{sHW}, 8")
        A(f"s_add_u32 s{sOff}, s{sOff}, s56")
        if wrot: A(f"s_lshl_b32 s57, s{sB}, 13")
        for i in range(0 if nowo else 32):
            if wrot: A(f"s_add_u32 s58, s{sOff}, s57")
            if i >= WOT: A(f"s_waitcnt vmcnt({WOT-1})")
            A(f"buffer_load_dwordx4 v[{W+4*i}:{W+4*i+3}], v{vWoff}, s[{sW}:{sW+3}], s{58 if wrot else sOff} offen {wpol}")
            if wrot:
                A("s_add_u32 s57, s57, 4096"); A(f"s_and_b32 s57, s57, {(rmask & 15) * 4096 + 4095}")
                if i == 15 and rmask & 16: A(f"s_add_u32 s{sOff}, s{sOff}, 65536")
            elif i < 31: A(f"s_add_u32 s{sOff}, s{sOff}, 4096")
        A("s_waitcnt vmcnt(0)")
    def ready_poll():
        A(f"s_cmp_lg_u32 s{sHW}, 0")
        A(f"s_cbranch_scc1 {L('cpoll_done')}")
        A(f"s_lshl_b32 s82, s{sB}, 4")
        A(f"v_mov_b32 v{hT[0]}, 0")
        A("s_mov_b32 s57, 0")
        LBL(L("cpoll"))
        A(f"buffer_load_dwordx4 v[{hT[4]}:{hT[7]}], v{hT[0]}, s[{sDbg}:{sDbg+3}], s82 offen sc1")
        A("s_waitcnt vmcnt(0)")
        A(f"v_and_b32 v{hT[4]}, v{hT[4]}, v{hT[5]}")
        A(f"v_and_b32 v{hT[6]}, v{hT[6]}, v{hT[7]}")
        A(f"v_and_b32 v{hT[4]}, v{hT[4]}, v{hT[6]}")
        A("s_add_u32 s57, s57, 1")
        A(f"v_readfirstlane_b32 s56, v{hT[4]}")
        A("s_cmp_ge_u32 s57, 0x400000")
        A(f"s_cbranch_scc1 {L('cpoll_done')}")
        A("s_cmp_lg_u32 s56, 0")
        A(f"s_cbranch_scc1 {L('cpoll_done')}")
        A("s_sleep 32")
        A(f"s_branch {L('cpoll')}")
        LBL(L("cpoll_done"))
    if early: wo_loads()
    elif ctl:
        A(f"s_cmp_eq_u32 s{sHW}, {CK}")
        A(f"s_cbranch_scc1 {L('nowo1')}")
        wo_loads()
        if tv:
            A("s_lshl_b32 s56, s2, 21")
            A(f"s_add_u32 s{sW}, s20, s56"); A(f"s_addc_u32 s{sW+1}, s21, 0")
            A(f"s_mov_b32 s{sW+2}, 0x200000"); A(f"s_mov_b32 s{sW+3}, 0x20000")
            A(f"v_lshlrev_b32 v{hT[0]}, {tv}, v{vLane}")
            A(f"buffer_load_dword v{hT[4]}, v{hT[0]}, s[{sW}:{sW+3}], 0 offen nt")
        LBL(L("nowo1"))
        ctl_loop("k", CK, 4 * (128 - XK), AK)
    elif WOP == 0: wo_loads()
    A("s_waitcnt vmcnt(0) lgkmcnt(0)")
    for r in range(4):
        A(f"v_and_b32 v{vTog+r}, 1, v{vTog+r}")
        A(f"v_xor_b32 v{vTog+r}, 1, v{vTog+r}")
    stamp()
    if early:
        A(f"s_cmp_eq_u32 s{sHW}, {CK}")
        A(f"s_cbranch_scc1 {L('nobar2')}")
    A("s_barrier")
    if early: LBL(L("nobar2"))
    stamp()
    if early: pass
    elif ctl:
        A(f"s_cmp_lg_u32 s{sHW}, {CK}")
        A(f"s_cbranch_scc1 {L('nowo2')}")
        wo_loads()
        LBL(L("nowo2"))
    elif WOP == 1: wo_loads()
    if not xp & 1: ready_poll()
    if tout:
        A(f"s_cmp_lg_u32 s83, s{sH}")
        A(f"s_cbranch_scc1 {L('notout')}")
        A(f"v_lshlrev_b32 v{hT[0]}, 3, v{vLane}")
        A("s_add_u32 s56, s46, s47")
        A("s_mov_b32 exec_hi, 0")
        A(f"buffer_load_dwordx2 v[{hT[4]}:{hT[5]}], v{hT[0]}, s[{sOut}:{sOut+3}], s56 offen")
        A("s_mov_b32 exec_hi, -1")
        A("s_waitcnt vmcnt(0)")
        LBL(L("notout"))
    sReh = 95
    PB = W
    if reh:
        assert early and not g1
        PB = 192
        A(f"s_cmp_eq_u32 s{sHW}, 1")
        A(f"s_cselect_b32 s{sReh}, 1, 0")
        LBL(L("tail"))
    A(f"v_and_b32 v{hT[2]}, 3, v{vLane}")
    A(f"v_lshlrev_b32 v{hT[2]}, 4, v{hT[2]}")
    def gate_merge():
        A("s_mov_b32 exec_lo, 0")
        for r in range(4): A(f"v_or_b32 v{vTog+r}, v{vTog+r}, v{hT[4]+r}")
        A("s_mov_b32 exec_lo, -1")
    late = early and not g1
    if not late and not c4:
        A(f"ds_read_b128 v[{hT[4]}:{hT[7]}], v{hT[2]} offset:{L_G}")
        A("s_waitcnt lgkmcnt(0)")
        gate_merge()
    if wrot:
        A(f"s_lshl_b32 s56, s{sB}, 1")
        A(f"v_add_u32 v{hT[0]}, s56, v{vC}")
        A(f"v_and_b32 v{hT[0]}, 15, v{hT[0]}")
        A(f"v_lshlrev_b32 v{hT[0]}, 4, v{hT[0]}")
    else: A(f"v_lshlrev_b32 v{hT[0]}, 4, v{vC}")
    A(f"v_lshl_add_u32 v{hT[0]}, v{vG}, 2, v{hT[0]}")
    if reh:
        A(f"s_cmp_eq_u32 s{sReh}, 1")
        A(f"s_cbranch_scc1 {L('nobar3')}")
    if ctl: ctl_loop("v", CV, 4 * (256 - XV), AV)
    A("s_setprio 3")
    stamp()
    A("s_barrier")
    stamp()
    if reh: LBL(L("nobar3"))
    for w in range(4):
        A(f"ds_read2st64_b32 v[{vXf+2*w}:{vXf+2*w+1}], v{hT[0]} offset0:{L_OP//256+2*w} offset1:{L_OP//256+2*w+1}")
    if late:
        A(f"ds_read_b128 v[{hT[4]}:{hT[7]}], v{hT[2]} offset:{L_G}")
        A("s_waitcnt lgkmcnt(1)")
    else: A("s_waitcnt lgkmcnt(0)")
    for k in range(2):
        A(f"v_add_f32 v{vXf+k}, v{vXf+k}, v{vXf+2+k}")
        A(f"v_add_f32 v{vXf+4+k}, v{vXf+4+k}, v{vXf+6+k}")
    for k in range(2):
        A(f"v_add_f32 v{vXf+k}, v{vXf+k}, v{vXf+4+k}")
    for k in range(2):
        A(f"v_cvt_pk_bf16_f32 v{vXs+k}, v{vXf+k}, v{vXf+k}")
    nop(1)
    diag_matvec(vXs, False)
    if late:
        A("s_waitcnt lgkmcnt(0)")
        if reh:
            A(f"s_cmp_eq_u32 s{sReh}, 1")
            A(f"s_cbranch_scc1 {L('nopub0')}")
        gate_merge()
        A(f"s_mov_b32 exec_hi, s{sEH}")
        if not reh: nop(0)
    elif c4:
        A("s_mov_b32 exec_hi, 0")
        nop(6)
    else:
        A(f"s_mov_b32 exec_hi, s{sEH}")
        nop(6)
    if c4:
        for r in range(4): A(f"v_and_or_b32 v{vAcc+r}, v{vAcc+r}, -2, v{vTog+r}")
        A(f"buffer_store_dwordx4 v[{vAcc}:{vAcc+3}], v{vPO}, s[{sWS}:{sWS+3}], 0 offen sc1")
        A("s_mov_b32 exec_hi, -1")
        stamp()
        A(f"s_cmp_lg_u32 s83, s{sB}")
        A(f"s_cbranch_scc1 {L('hend')}")
        sets = [W + 16 * k for k in range(NS)]
        for k in range(NS):
            poll_issue(sets[k])
            if k < NS - 1: A(f"s_sleep {SS}")
        A("s_mov_b32 s57, 0")
        A("s_add_u32 s82, s46, s81")
        LBL(L("gpoll"))
        for k in range(NS):
            r = sets[k]
            for i in range(4):
                A(f"s_waitcnt vmcnt({4*(NS-1)+3-i})")
                for j in range(4): A(f"v_alignbit_b32 v{hT[1]}, v{r+4*i+j}, v{hT[1]}, 1")
                if i:
                    for j in range(4): A(f"v_add_f32 v{vAcc+j}, v{(r if i == 1 else vAcc)+j}, v{r+4*i+j}")
            A(f"v_xor_b32 v{hT[1]}, v{hT[1]}, v{vOld}")
            A(f"v_cmp_gt_u32 vcc, 0xffff0000, v{hT[1]}")
            A(f"v_permlane32_swap_b32 v{vAcc}, v{vAcc+1}")
            A(f"v_permlane32_swap_b32 v{vAcc+2}, v{vAcc+3}")
            A(f"v_add_f32 v{vAcc}, v{vAcc}, v{vAcc+1}")
            A(f"v_add_f32 v{vAcc+2}, v{vAcc+2}, v{vAcc+3}")
            A(f"s_cbranch_vccz {L('gdone')}")
            poll_issue(r)
        A("s_add_u32 s57, s57, 1")
        A("s_cmp_lt_u32 s57, 0x200000")
        A(f"s_cbranch_scc1 {L('gpoll')}")
        LBL(L("gdone"))
        nop(0)
        A(f"v_permlane16_swap_b32 v{vAcc}, v{vAcc+2}")
        A(f"v_add_f32 v{vAcc}, v{vAcc}, v{vAcc+2}")
        nop(1)
        A(f"v_add_f32_dpp v{vAcc}, v{vAcc}, v{vAcc} row_ror:8 row_mask:0xf bank_mask:0xf")
        rbf(vAcc, vAcc)
        A(f"v_mul_f32 v{vAcc}, v{vAcc}, v{vGres}")
        rbf(vAcc, vAcc)
        A(f"v_add_f32 v{vAcc}, v{vAcc}, v{vXo}")
        A(f"v_cvt_pk_bf16_f32 v{vAcc}, v{vAcc}, v{vAcc}")
        A("s_mov_b32 exec_lo, 0x00ff00ff"); A("s_mov_b32 exec_hi, 0x00ff00ff")
        A(f"buffer_store_short v{vAcc}, v{vKeep}, s[{sOut}:{sOut+3}], s82 offen")
    else:
        for r in range(4): A(f"v_and_or_b32 v{vAcc+r}, v{vAcc+r}, v{vKeep}, v{vTog+r}")
        A(f"buffer_store_dwordx4 v[{vAcc}:{vAcc+3}], v{vPO}, s[{sWS}:{sWS+3}], 0 offen sc1")
        A("s_mov_b32 exec_hi, -1")
        stamp()
        A(f"s_cmp_lg_u32 s83, s{sH}")
        if reh: LBL(L("nopub"))
        A(f"s_cbranch_scc1 {L('hend')}")
        A(f"v_lshlrev_b32 v{hT[0]}, 4, v{vLane}")
        A("s_mov_b32 s57, 0")
        if reh: A(f"s_lshl_b32 s57, s{sReh}, 22")
        LBL(L("gpoll"))
        A("s_mov_b32 s56, s79")
        A(f"buffer_load_dwordx4 v[{vFin}:{vFin+3}], v{vGo}, s[{sWS}:{sWS+3}], s81 offen sc1")
        for i in range(16):
            A(f"buffer_load_dwordx4 v[{PB+4*i}:{PB+4*i+3}], v{hT[0]}, s[{sWS}:{sWS+3}], s56 offen offset:{(i%4)*1024} sc1")
            if i % 4 == 3 and i < 15: A("s_add_u32 s56, s56, 4096")
        for i in range(16):
            A(f"s_waitcnt vmcnt({15-i})")
            if i == 0:
                for r in range(4): A(f"v_alignbit_b32 v{hT[3]}, v{vFin+r}, v{hT[3]}, 1")
                A(f"v_xor_b32 v{hT[3]}, v{hT[3]}, v{vOld+2}")
                A(f"v_or_b32 v{hT[3]}, 0x0fffffff, v{hT[3]}")
                for r in range(4): A(f"v_and_b32 v{vFin+r}, 0xffff0000, v{vFin+r}")
            for r in range(4):
                n = hT[1] + (4 * i + r) // 32
                A(f"v_alignbit_b32 v{n}, v{PB+4*i+r}, v{n}, 1")
            if i:
                for r in range(4):
                    src = f"v{PB+r}" if i == 1 else f"v{vAcc+r}"
                    A(f"v_add_f32 v{vAcc+r}, {src}, v{PB+4*i+r}")
        A(f"v_xor_b32 v{hT[1]}, v{hT[1]}, v{vOld}")
        A(f"v_xor_b32 v{hT[2]}, v{hT[2]}, v{vOld+1}")
        A(f"v_and_b32 v{hT[1]}, v{hT[1]}, v{hT[3]}")
        A(f"v_and_b32 v{hT[1]}, v{hT[1]}, v{hT[2]}")
        A(f"v_cmp_ne_u32 vcc, -1, v{hT[1]}")
        A("s_add_u32 s57, s57, 1")
        A("s_cmp_ge_u32 s57, 0x400000")
        A(f"s_cbranch_scc1 {L('gdone')}")
        nop(3)
        A(f"s_cbranch_vccnz {L('gpoll')}")
        LBL(L("gdone"))
        for r in range(4): A(f"v_mov_b32 v{hT[r]}, v{vAcc+r}")
        nop(1)
        for r in range(4): A(f"v_permlane32_swap_b32 v{hT[r]}, v{vAcc+r}")
        for r in range(4): A(f"v_add_f32 v{vAcc+r}, v{vAcc+r}, v{hT[r]}")
        for r in range(4): rbf(vAcc + r, vAcc + r)
        for r in range(4): A(f"v_mul_f32 v{vAcc+r}, v{vAcc+r}, v{vFin+r}")
        for r in range(4): rbf(vAcc + r, vAcc + r)
        A(f"v_lshlrev_b32 v{hT[0]}, 16, v{vXo}")
        A(f"v_and_b32 v{hT[1]}, 0xffff0000, v{vXo}")
        A(f"v_lshlrev_b32 v{hT[2]}, 16, v{vXo+1}")
        A(f"v_and_b32 v{hT[3]}, 0xffff0000, v{vXo+1}")
        for r in range(4): A(f"v_add_f32 v{vAcc+r}, v{vAcc+r}, v{hT[r]}")
        A(f"v_cvt_pk_bf16_f32 v{hT[4]}, v{vAcc}, v{vAcc+1}")
        A(f"v_cvt_pk_bf16_f32 v{hT[5]}, v{vAcc+2}, v{vAcc+3}")
        A(f"v_lshlrev_b32 v{hT[0]}, 3, v{vLane}")
        A("s_add_u32 s56, s46, s47")
        if reh:
            A(f"s_cmp_eq_u32 s{sReh}, 1")
            A(f"s_cbranch_scc1 {L('hend')}")
        A("s_mov_b32 exec_hi, 0")
        A(f"buffer_store_dwordx2 v[{hT[4]}:{hT[5]}], v{hT[0]}, s[{sOut}:{sOut+3}], s56 offen {opol.replace('+', ' ').replace('def', '')}")
    if stamps:
        A("s_waitcnt vmcnt(0)")
        A("s_mov_b64 exec, -1")
        stamp()
        A(f"v_writelane_b32 v{vSt}, s57, 62")
    LBL(L("hend"))
    if reh:
        A(f"s_cmp_eq_u32 s{sReh}, 1")
        A(f"s_mov_b32 s{sReh}, 0")
        A(f"s_cbranch_scc1 {L('tail')}")
    stamp_flush()
    LBL(L("end"))
    A("s_endpgm")
    if reh:
        LBL(L("nopub0"))
        A(f"s_lshr_b32 s56, s{sH}, 2")
        A(f"s_cmp_lg_u32 s56, s{sB}")
        A(f"s_branch {L('nopub')}")
        A("s_endpgm")
    return "\n".join(out)

HEADER = open("cdna_kernels/" + NAME + ".s.ref").read().split("; Override launch geometry")[0]

def full(path, **kw):
    kname = NAME + "_kernel"
    body = gen(**kw)
    s = HEADER
    s += f"; @launch grid=(256,1,1) block=(512,1,1) lds={lds_bytes(**kw)}\n"
    s += '.amdgcn_target "amdgcn-amd-amdhsa--gfx950"\n.text\n'
    s += f".globl {kname}\n.p2align 8\n.type {kname},@function\n{kname}:\n"
    s += body + "\n"
    s += f""".section .rodata,"a"
.p2align 6
.amdhsa_kernel {kname}
  .amdhsa_next_free_vgpr 256
  .amdhsa_next_free_sgpr 96
  .amdhsa_accum_offset 256
  .amdhsa_group_segment_fixed_size 0
  .amdhsa_kernarg_size 104
  .amdhsa_user_sgpr_count 2
  .amdhsa_user_sgpr_kernarg_segment_ptr 1
  .amdhsa_system_sgpr_workgroup_id_x 1
  .amdhsa_float_denorm_mode_32 3
.end_amdhsa_kernel
"""
    open(path, "w").write(s)

if __name__ == "__main__":
    kw = {}
    path = "cdna_kernels/" + NAME + ".s"
    for a in sys.argv[1:]:
        k, v = a.split("=")
        if k == "out": path = v
        else: kw[k] = int(v) if v.lstrip("-").isdigit() else v
    full(path, **kw)
```

```python
import sys, struct
NAME = "recurrent_scan__mha_block_cached__mixer_token_mlp__decode"

def f32(x): return "0x%08x" % struct.unpack("<I", struct.pack("<f", x))[0]

import math
SCALE = f32(128 ** -0.5)
LOG2E = f32(math.log2(math.e))
GC0 = -2.0 * math.sqrt(2.0 / math.pi) * math.log2(math.e)
GC1 = GC0 * 0.044715

L_QP = 0
L_ST = 2048
L_OP = 4096
L_SC = 8192
L_G = 6144
L_PR = 2304
L_FL = 2320
L_CN = 2336
L_HO = 2560
L_STG = L_SC + 32768 + 512
WS_PART = 0
WS_GATE = 512 * 1024
WS_CX = 0x200000
WS_CG = 0x280000
WS_BYTES = 0x300000
def lds_bytes(E=16, **kw): return L_STG + 4 * E * 1024

def gen(W="6", RD=8, PDL=8, E=16, HT=8, HW0=12, WOT=4, WOP=0, MIDA=1, MIDB=1, MIDC=2, kname=NAME + "_kernel", stamps=False, pol="nt", rot=1, sprio=1, wpol="nt", nowo=0, perm=0, pst=0, nowq=0, WE=0, NE=1, vpol=None, alt="", fst=0,
        ctl=0, LV="7:6:5", theta=48, bias=0, gbias=300, gn=4, slp=32, XK=6, XV=6, clamp=64, CK=3, CV=2, AK=12, AV=32, krot=0, NP=3, FB=0, wst=4, tst=1, ginc="16", ksh=0, kmask=255, tout=0, tv=0, dsh=3, early=0, opol="def", reh=0, QD=0, QP=0, QT="2111", xp=0, wrot=0, BX=0, BXL=45, LVE="", RDE=0, hp="3033", pw=0, gn2=0, GX=40, g1=0, GW=1, wrep=0, rpol="def", rmask=31, wpf=0, PFT=2, pfpol="def", qpf=0, c4=0, NS=3, SS=4, RB=0, gn1=0, G1X=40, PFS=0, PFD=4, prop=0, pc=24, pi=4, fe=0):
    RG = 8
    wpol = wpol.replace("+", " ").replace("def", "")
    kpol = pol.replace("+", " ").replace("def", "")
    vpol = kpol if vpol is None else vpol.replace("+", " ").replace("def", "")
    pat = [int(c, 16) for c in str(W)]
    assert RD > max(pat) or RD == max(pat) == min(pat)
    assert E % 4 == 0 and E <= 28
    lv = [[int(c, 16) for c in x] for x in LV.split(":")]
    assert RD > max(lv[0])
    R = 4 * RG
    out = []
    def A(s): out.append("    " + s)
    def LBL(s): out.append(s + ":")
    def C(s): out.append("    ; " + s)
    L = lambda s: f"L_{s}"

    vLane = 1
    vMask = [4, 5, 6, 7]
    sWave = 3
    sB, sH = 42, 43
    def nop(n): A(f"s_nop {n}")

    def wave_reduce(v, op, dst, st=60):
        for r in (8, 4, 2, 1):
            nop(1)
            A(f"v_{op}_f32_dpp v{v}, v{v}, v{v} row_ror:{r} row_mask:0xf bank_mask:0xf")
        nop(0)
        for i in range(4):
            A(f"v_readlane_b32 s{st+i}, v{v}, {16*i}")
        nop(0)
        A(f"v_mov_b32 v{dst}, s{st}")
        A(f"v_{op}_f32 v{dst}, s{st+1}, v{dst}")
        A(f"v_{op}_f32 v{dst}, s{st+2}, v{dst}")
        A(f"v_{op}_f32 v{dst}, s{st+3}, v{dst}")

    vSt = 59
    def stamp():
        if not stamps: return
        A("s_memrealtime s[90:91]")
        A("s_waitcnt lgkmcnt(0)")
        A("s_mov_b32 m0, s92")
        A(f"v_writelane_b32 v{vSt}, s90, m0")
        A("s_add_u32 s92, s92, 1")
    def stamp_flush():
        if not stamps: return
        A("s_mov_b64 exec, -1")
        A("s_getreg_b32 s90, hwreg(HW_REG_XCC_ID)")
        A(f"v_writelane_b32 v{vSt}, s90, 63")
        A("s_mov_b32 s84, s40"); A("s_mov_b32 s85, s41"); A("s_mov_b32 s86, 0x1000000"); A("s_mov_b32 s87, 0x20000")
        A(f"s_lshl_b32 s90, s{89 if perm or RB else 2}, 11")
        A("s_add_u32 s90, s90, 0x100000")
        A("v_lshlrev_b32 v58, 2, v0")
        A(f"buffer_store_dword v{vSt}, v58, s[84:87], s90 offen")
    def rbf(dst, src):
        A(f"v_cvt_pk_bf16_f32 v{dst}, v{src}, v{src}")
        A(f"v_and_b32 v{dst}, 0xffff0000, v{dst}")

    C("one workgroup per (batch, head): waves 0-3 stream K then V, waves 4-7 do LN/q, gate, wo and the hand-off")
    A("s_cmp_ge_u32 s2, 256")
    A(f"s_cbranch_scc1 {L('end')}")
    if perm or (RB and stamps): A("s_mov_b32 s89, s2")
    if perm == 1:
        A("s_lshr_b32 s4, s2, 3"); A("s_and_b32 s2, s2, 7"); A("s_lshl_b32 s2, s2, 5"); A("s_or_b32 s2, s2, s4")
    if perm == 2:
        A("s_and_b32 s4, s2, 7"); A("s_bfe_u32 s5, s2, 0x20003"); A("s_andn2_b32 s2, s2, 31")
        A("s_lshl_b32 s4, s4, 2"); A("s_or_b32 s2, s2, s4"); A("s_or_b32 s2, s2, s5")
    A("s_load_dwordx16 s[16:31], s[0:1], 0")
    def karg2():
        A("s_load_dwordx8 s[32:39], s[0:1], 64")
        A("s_load_dwordx2 s[40:41], s[0:1], 96")
    if not fe or stamps: karg2()
    if stamps:
        A("s_mov_b32 s92, 0"); A(f"v_mov_b32 v{vSt}, 0")
        stamp()
    A("v_lshrrev_b32 v2, 6, v0")
    A(f"v_and_b32 v{vLane}, 63, v0")
    A(f"v_readfirstlane_b32 s{sWave}, v2")
    def masks(a, b):
        A(f"v_and_b32 v{a}, 1, v{vLane}")
        A(f"v_lshlrev_b32 v{a}, 4, v{a}")
        A(f"v_mov_b32 v{b}, 0xffff")
        A(f"v_lshlrev_b32 v{a}, v{a}, v{b}")
        A(f"v_bfe_u32 v{b}, v{vLane}, 1, 3")
        for m in range(4):
            A(f"v_cmp_eq_u32 vcc, {m}, v{b}")
            nop(1)
            A(f"v_cndmask_b32 v{vMask[m]}, 0, v{a}, vcc")
    if not fe:
        A(f"s_lshr_b32 s{sB}, s2, 5")
        A(f"s_and_b32 s{sH}, s2, 31")
        masks(8, 9)
    A(f"s_cmp_ge_u32 s{sWave}, 4")
    A(f"s_cbranch_scc1 {L('helper')}")

    alts = [a.split(":") for a in alt.split(",") if a]
    for i, (lo, hi, kp, vp) in enumerate(alts):
        A(f"s_sub_u32 s55, s2, {lo}")
        A(f"s_cmp_lt_u32 s55, {int(hi) - int(lo)}")
        A(f"s_cbranch_scc1 L_stream{i}")
    i_s0 = len(out)
    vKoff, vVoff = 2, 3
    vM, vLs, vS = 8, 9, 10
    vT = [11, 12, 13, 14, 15]
    D = 16
    O = 20
    vP = [24, 25]
    vS2 = 26
    vLds = 28
    vMg, vRl = 29, 30
    vStg = 31
    BQ = 32
    RING = 64
    TMP = RING + RG * 16
    sK, sV = 44, 48
    sKpos, sVpos, sCnt = 52, 53, 54
    STEP = 16384

    C("==== streamer waves ====")
    A(f"v_and_b32 v{vKoff}, 3, v{vLane}")
    A(f"v_lshlrev_b32 v{vKoff}, 4, v{vKoff}")
    A(f"v_bfe_u32 v10, v{vLane}, 2, 2")
    A(f"v_lshl_add_u32 v{vKoff}, v10, 8, v{vKoff}")
    A(f"v_lshrrev_b32 v10, 4, v{vLane}")
    A(f"v_lshl_add_u32 v{vKoff}, v10, 6, v{vKoff}")
    if not fe: A(f"v_lshlrev_b32 v{vVoff}, 4, v{vLane}")
    A("s_lshl_b32 s55, s2, 21")
    if fe:
        assert wst == 4 and tst == 1 and not krot
        A(f"s_lshl_b32 s{sKpos}, s{sWave}, 12")
    else: A(f"s_mul_i32 s{sKpos}, s{sWave}, {wst * 1024}")
    ginc = [int(x) * 1024 for x in str(ginc).split(".")]
    blocks = set()
    for w_ in range(4):
        p_ = w_ * wst * 1024
        for g_ in range(128):
            for t_ in range(4): blocks.add((p_ + t_ * tst * 1024) // 1024)
            p_ += ginc[g_ % len(ginc)]
    assert blocks == set(range(2048)), "bad block map"
    vKo = [vKoff] * 4; vVo = [vVoff] * 4
    if tst != 1:
        vKo = [vKoff, 52, 53, 54]; vVo = [vVoff, 55, 56, 57]
        for t_ in range(1, 4):
            A(f"v_add_u32 v{vKo[t_]}, {t_ * (tst - 1) * 1024}, v{vKoff}")
            A(f"v_add_u32 v{vVo[t_]}, {t_ * (tst - 1) * 1024}, v{vVoff}")
    if krot:
        A(f"s_lshr_b32 s58, s2, {ksh}")
        A(f"s_and_b32 s58, s58, {kmask}")
        A(f"s_mul_i32 s58, s58, {krot * 16384}")
        A(f"s_add_u32 s{sKpos}, s{sKpos}, s58")
        A(f"s_and_b32 s{sKpos}, s{sKpos}, 0x1fffff")
    if not fe: A(f"s_mov_b32 s{sVpos}, s{sKpos}")
    A(f"s_mov_b32 s{sK+2}, 0x200000"); A(f"s_mov_b32 s{sK+3}, 0x20000")
    if fe and sprio: A(f"s_setprio {sprio}")
    A("s_waitcnt lgkmcnt(0)")
    if fst: stamp()
    A(f"s_add_u32 s{sK}, s18, s55"); A(f"s_addc_u32 s{sK+1}, s19, 0")
    def vsrd():
        A(f"s_add_u32 s{sV}, s20, s55"); A(f"s_addc_u32 s{sV+1}, s21, 0")
        A(f"s_mov_b32 s{sV+2}, 0x200000"); A(f"s_mov_b32 s{sV+3}, 0x20000")
    if not fe: vsrd()

    st = {"last": -1, "known": -1, "lab": 0, "dyn": False}
    sMode = 57
    vProg, vPrA, vFlA, vFlag = 48, 49, 50, 51
    def group():
        if not st["dyn"]: return
        A("s_waitcnt lgkmcnt(0)")
        A(f"v_readfirstlane_b32 s{sMode}, v{vFlag}")
        A(f"v_add_u32 v{vProg}, 1, v{vProg}")
        A(f"ds_write_b32 v{vPrA}, v{vProg}")
        A(f"ds_read_b32 v{vFlag}, v{vFlA}")
    def wait_vm(n):
        A(f"s_waitcnt vmcnt({n})")
        st["known"] = max(st["known"], st["last"] - n)
    def slot(l):
        if l < R: return RING + l * 4
        if l < R + E: return TMP + ((l - R) % 8) * 4
        return RING + ((l - E) % R) * 4
    def free(l):
        if l < R + E: return True
        return (l - R - E if l < 2 * R + E else l - R) in done
    def need(l):
        assert l <= st["last"]
        if st["known"] < l: wait_vm(st["last"] - l)
    def issue(cap=None):
        l = st["last"] + 1
        if l >= 1024: return
        if cap == "dyn":
            hi, mid, lo = (x[l % len(x)] for x in lv)
            st["lab"] += 1
            lab = f"L_th{st['lab']}@LS@"
            if st["known"] < l - hi: wait_vm(hi - 1)
            ph = (0, 2, 1, 3)[l % 4]
            if mid < hi:
                A(f"s_cmp_le_u32 s{sMode}, {ph}" if prop else f"s_cmp_eq_u32 s{sMode}, 0"); A(f"s_cbranch_scc1 {lab}")
                A(f"s_waitcnt vmcnt({mid-1})")
            if lo < mid:
                A(f"s_cmp_le_u32 s{sMode}, {4+ph}" if prop else f"s_cmp_lg_u32 s{sMode}, 2"); A(f"s_cbranch_scc1 {lab}")
                A(f"s_waitcnt vmcnt({lo-1})")
            LBL(lab)
        elif cap is not None and st["known"] < l - cap: wait_vm(cap - 1)
        kind = "k" if l < 512 else "v"
        t = l % 4
        srd, pos, vo = (sK, sKpos, vKo[t]) if kind == "k" else (sV, sVpos, vVo[t])
        pol = "@KP@" if kind == "k" else "@VP@"
        if R <= l < R + E:
            if t == 0 or stamps:
                A(f"s_add_u32 m0, s{sStg}, {(l - t - R) * 1024}")
                nop(0)
            A(f"buffer_load_dwordx4 v{vo}, s[{srd}:{srd+3}], s{pos} offen offset:{t*1024} {pol} lds")
        else:
            assert free(l), l
            r = slot(l)
            A(f"buffer_load_dwordx4 v[{r}:{r+3}], v{vo}, s[{srd}:{srd+3}], s{pos} offen offset:{t*1024} {pol}")
        if t == 3:
            A(f"s_add_u32 s{pos}, s{pos}, {ginc[(l // 4) % len(ginc)] & 0xffffffff}")
            if krot: A(f"s_and_b32 s{pos}, s{pos}, 0x1fffff")
        st["last"] = l
        if early and t == 0: group()
    done = set()
    sStg = 56
    def stg():
        A(f"s_mul_i32 s{sStg}, s{sWave}, {E*1024}")
        A(f"s_add_u32 s{sStg}, s{sStg}, {L_STG}")
    if not fe: stg()

    if sprio and not fe: A(f"s_setprio {sprio}")
    qt = [int(c) for c in str(QT)] if QD else [0, 0, 0, 0]
    n_static = min(R + E, R + E - QD + QP + sum(qt))
    def init_regs():
        if fe:
            vsrd(); stg()
            A(f"s_lshl_b32 s{sVpos}, s{sWave}, 12")
            A(f"v_lshlrev_b32 v{vVoff}, 4, v{vLane}")
            masks(8, 9)
        A(f"v_mov_b32 v{vM}, 0xff7fffff")
        A(f"v_mov_b32 v{vLs}, 0")
        A(f"v_mov_b32 v{vS}, 0")
        A(f"s_lshl_b32 s55, s{sWave}, 13")
        A(f"s_add_u32 s55, s55, {L_SC}")
        A(f"v_lshl_add_u32 v{vLds}, v{vLane}, 2, s55")
        for r in range(4): A(f"v_mov_b32 v{O+r}, 0")
        A(f"v_add_u32 v{vStg}, s{sStg}, v{vVoff}")
        A(f"v_lshrrev_b32 v{vT[0]}, 2, v{vLane}")
        A(f"v_lshlrev_b32 v{vT[0]}, 5, v{vT[0]}")
        A(f"v_and_b32 v{vT[1]}, 3, v{vLane}")
        if ctl:
            A(f"s_lshl_b32 s55, s{sWave}, 2")
            A(f"s_add_u32 s55, s55, {L_PR}")
            A(f"v_mov_b32 v{vPrA}, s55")
            if pw: A(f"v_add_u32 v{vFlA}, {L_FL - L_PR}, v{vPrA}")
            else: A(f"v_mov_b32 v{vFlA}, {L_FL}")
            A(f"v_mov_b32 v{vProg}, {(n_static + 3) // 4 - RD // 4 if early else NP * RG}")
            A(f"v_mov_b32 v{vFlag}, {pi if prop else 1}")
            A(f"s_mov_b32 s{sMode}, {pi if prop else 1}")
            A(f"ds_write_b32 v{vPrA}, v{vProg}")
            A(f"ds_write_b32 v{vFlA}, v{vFlag}")
            if c4: A(f"ds_write_b32 v{vS}, v{vS} offset:{L_CN}")
            A("s_waitcnt lgkmcnt(0)")
    def tick(n, cap):
        for _ in range(n):
            if st["last"] + 1 < R + E: issue(cap)
    C("prologue: fill the register ring and the LDS stage with K while q is being computed")
    for l in range(R + E - QD):
        issue(PDL)
        if l == PDL - 1: init_regs()
        if pst and l % 8 == 7: stamp()
        if fst and (l == 0 or PDL - 1 <= l < PDL + 8): stamp()
    tick(QP, None)
    stamp()
    A("s_barrier")
    stamp()
    for w in range(4):
        for hlf in range(2):
            r = TMP + w * 8 + hlf * 4
            A(f"ds_read_b128 v[{r}:{r+3}], v{vT[0]} offset:{L_QP + w*512 + hlf*16}")
    tick(qt[0], PDL)
    A("s_waitcnt lgkmcnt(0)")
    for e in range(8):
        A(f"v_add_f32 v{TMP+e}, v{TMP+e}, v{TMP+8+e}")
        A(f"v_add_f32 v{TMP+16+e}, v{TMP+16+e}, v{TMP+24+e}")
    tick(qt[1], PDL)
    for e in range(8):
        A(f"v_add_f32 v{TMP+e}, v{TMP+e}, v{TMP+16+e}")
    for m in range(4):
        A(f"v_cvt_pk_bf16_f32 v{TMP+8+m}, v{TMP+2*m}, v{TMP+2*m+1}")
    tick(qt[2], PDL)
    for t in range(4):
        A(f"v_cmp_eq_u32 vcc, {t}, v{vT[1]}")
        nop(1)
        for m in range(4):
            A(f"v_cndmask_b32 v{BQ+4*t+m}, 0, v{TMP+8+m}, vcc")
    tick(qt[3], PDL)
    nop(1)
    assert st["last"] + 1 == n_static

    cnt = {"c": 0, "pend": 0}
    plan = {}
    capo = {"w": 0}
    def capf(): return capo["w"] or ("dyn" if st["dyn"] else pat[(st["last"] + 1) % len(pat)])
    if early: st["dyn"] = True
    def consume(l, mfma):
        cnt["pend"] += plan.get(cnt["c"], 1)
        need(l)
        A(mfma)
        done.add(l)
        while cnt["pend"] and free(st["last"] + 1):
            issue(capf())
            cnt["pend"] -= 1
        cnt["c"] += 1
    def kstep(j):
        n = j % RG
        u = j % 4
        if R <= 4 * j < R + E: A("s_waitcnt lgkmcnt(0)")
        if R <= 4 * j + 4 < R + E:
            need(4 * j + 7)
            for l in range(4 * j + 4, 4 * j + 8):
                r = slot(l)
                A(f"ds_read_b128 v[{r}:{r+3}], v{vStg} offset:{(l-R)*1024}")
        for t in range(4):
            l = 4 * j + t
            r = slot(l)
            c = "0" if t == 0 else f"v[{D}:{D+3}]"
            consume(l, f"v_mfma_f32_16x16x32_bf16 v[{D}:{D+3}], v[{r}:{r+3}], v[{BQ+4*t}:{BQ+4*t+3}], {c}")
            if t == 0 and not early: group()
        nop(7)
        a, b, c = u ^ 1, u ^ 2, u ^ 3
        A(f"v_add_f32_dpp v{vT[0]}, v{D+b}, v{D+u} row_ror:8 row_mask:0xf bank_mask:0xf")
        A(f"v_add_f32_dpp v{vT[1]}, v{D+c}, v{D+a} row_ror:8 row_mask:0xf bank_mask:0xf")
        nop(1)
        A(f"v_add_f32_dpp v{vS}, v{vT[1]}, v{vT[0]} row_ror:{4 if u & 1 else 12} row_mask:0xf bank_mask:{hex(1 << u)}")
        if u == 3:
            rbf(vT[2], vS)
            A(f"v_mul_f32 v{vT[2]}, {SCALE}, v{vT[2]}")
            rbf(vT[2], vT[2])
            A(f"ds_write_b32 v{vLds}, v{vT[2]} offset:{(n//4)*256}")
            A(f"v_max_f32 v{vT[3]}, v{vM}, v{vT[2]}")
            A(f"v_sub_f32 v{vT[0]}, v{vM}, v{vT[3]}")
            A(f"v_sub_f32 v{vT[1]}, v{vT[2]}, v{vT[3]}")
            A(f"v_mul_f32 v{vT[0]}, {LOG2E}, v{vT[0]}")
            A(f"v_mul_f32 v{vT[1]}, {LOG2E}, v{vT[1]}")
            A(f"v_exp_f32 v{vT[0]}, v{vT[0]}")
            A(f"v_exp_f32 v{vT[1]}, v{vT[1]}")
            A(f"v_mov_b32 v{vM}, v{vT[3]}")
            A(f"v_fma_f32 v{vLs}, v{vLs}, v{vT[0]}, v{vT[1]}")
    def spread(c0, n_consume, n_issue, first):
        for c in range(c0, c0 + n_consume): plan[c] = 0
        first = min(first, n_issue)
        for k in range(first): plan[c0 + k] += 1
        rest = n_issue - first
        for k in range(rest):
            c = c0 + first + ((k + 1) * (n_consume - first)) // rest - 1
            plan[c] += 1
    def rel(): return (st["last"] - cnt["c"], st["known"] - cnt["c"])
    def skip_iters(n):
        st["last"] += R * n; st["known"] += R * n
        for l in range(cnt["c"], cnt["c"] + R * n): done.add(l)
        cnt["c"] += R * n

    NIT = 128 // RG
    C("K phase: scores -> LDS, running max / sum; s57 = in-flight window level from the balancing wave")
    spread(0, NP * R, NP * R - 1 + RD - st["last"], FB or max(pat))
    for it in range(NP):
        for j in range(it * RG, (it + 1) * RG): kstep(j)
        A(f"v_add_u32 v{vLds}, {RG*64}, v{vLds}")
        stamp()
    assert cnt["pend"] == 0
    assert st["last"] == NP * R - 1 + RD
    if ctl:
        st["dyn"] = True
        pat = lv[0]
    st["known"] = min(st["known"], st["last"] - pat[st["last"] % len(pat)])
    r0 = rel()
    A(f"s_mov_b32 s{sCnt}, {NIT-1-NP}")
    LBL(L("kloop"))
    for j in range(NP * RG, (NP + 1) * RG): kstep(j)
    A(f"v_add_u32 v{vLds}, {RG*64}, v{vLds}")
    stamp()
    A(f"s_sub_u32 s{sCnt}, s{sCnt}, 1")
    A(f"s_cmp_lg_u32 s{sCnt}, 0")
    A(f"s_cbranch_scc1 {L('kloop')}")
    assert rel() == r0, (rel(), r0)
    skip_iters(NIT - 2 - NP)
    for j in range(128 - RG, 128): kstep(j)
    assert st["last"] == 511 + RD
    stamp()
    C("softmax statistics of the workgroup")
    for _ in range(MIDA): issue()
    A(f"v_subrev_u32 v{vLds}, {8192 - RG*64}, v{vLds}")
    A(f"v_mov_b32 v{vT[0]}, v{vM}")
    wave_reduce(vT[0], "max", vT[2])
    A(f"v_sub_f32 v{vT[0]}, v{vM}, v{vT[2]}")
    A(f"v_mul_f32 v{vT[0]}, {LOG2E}, v{vT[0]}")
    A(f"v_exp_f32 v{vT[0]}, v{vT[0]}")
    nop(0)
    A(f"v_mul_f32 v{vT[0]}, v{vLs}, v{vT[0]}")
    for _ in range(MIDB): issue()
    wave_reduce(vT[0], "add", vT[3])
    A(f"v_mov_b32 v{D}, v{vT[2]}")
    A(f"v_mov_b32 v{D+1}, v{vT[3]}")
    A(f"s_lshl_b32 s55, s{sWave}, 3")
    A(f"v_mov_b32 v{vT[0]}, s55")
    A(f"v_mov_b32 v{vT[1]}, 0")
    A("s_mov_b64 exec, 1")
    A(f"ds_write_b64 v{vT[0]}, v[{D}:{D+1}] offset:{L_ST}")
    A("s_mov_b64 exec, -1")
    A(f"ds_read2st64_b32 v[{vS2}:{vS2+1}], v{vLds} offset0:0 offset1:1")
    for _ in range(MIDC): issue()
    A("s_waitcnt lgkmcnt(0)")
    stamp()
    A("s_barrier")
    stamp()
    A(f"ds_read_b128 v[{TMP}:{TMP+3}], v{vT[1]} offset:{L_ST}")
    A(f"ds_read_b128 v[{TMP+4}:{TMP+7}], v{vT[1]} offset:{L_ST+16}")
    A("s_waitcnt lgkmcnt(0)")
    A(f"v_max3_f32 v{vMg}, v{TMP}, v{TMP+2}, v{TMP+4}")
    A(f"v_max_f32 v{vMg}, v{vMg}, v{TMP+6}")
    for w in range(4):
        A(f"v_sub_f32 v{TMP+2*w}, v{TMP+2*w}, v{vMg}")
        A(f"v_mul_f32 v{TMP+2*w}, {LOG2E}, v{TMP+2*w}")
        A(f"v_exp_f32 v{TMP+2*w}, v{TMP+2*w}")
    nop(0)
    A(f"v_mul_f32 v{vT[0]}, v{TMP}, v{TMP+1}")
    for w in range(1, 4):
        A(f"v_fma_f32 v{vT[0]}, v{TMP+2*w}, v{TMP+2*w+1}, v{vT[0]}")
    A(f"v_rcp_f32 v{vRl}, v{vT[0]}")
    nop(0)
    A(f"v_fma_f32 v{vT[1]}, -v{vT[0]}, v{vRl}, 1.0")
    A(f"v_fma_f32 v{vRl}, v{vT[1]}, v{vRl}, v{vRl}")

    assert RG == 8, "V loop is written for 2 P registers per iteration"
    def vhead():
        stamp()
        A("s_waitcnt lgkmcnt(0)")
        for i in range(2): A(f"v_sub_f32 v{vP[i]}, v{vS2+i}, v{vMg}")
        for i in range(2): A(f"v_mul_f32 v{vP[i]}, {LOG2E}, v{vP[i]}")
        for i in range(2): A(f"v_exp_f32 v{vP[i]}, v{vP[i]}")
        A(f"v_add_u32 v{vLds}, 512, v{vLds}")
        for i in range(2): A(f"v_mul_f32 v{vP[i]}, v{vP[i]}, v{vRl}")
        for i in range(2): A(f"v_cvt_pk_bf16_f32 v{vP[i]}, v{vP[i]}, v{vP[i]}")
        A(f"ds_read2st64_b32 v[{vS2}:{vS2+1}], v{vLds} offset0:0 offset1:1")
        nop(0)
    def vstep(j):
        n = j % RG
        u = j % 4
        p = vP[n // 4]
        for t in range(4):
            for m in range(4):
                A(f"v_and_b32_dpp v{BQ+4*t+m}, v{p}, v{vMask[m]} row_newbcast:{u*4+t} row_mask:0xf bank_mask:0xf")
        for t in range(4):
            l = 4 * j + t
            r = slot(l)
            consume(l, f"v_mfma_f32_16x16x32_bf16 v[{O}:{O+3}], v[{BQ+4*t}:{BQ+4*t+3}], v[{r}:{r+3}], v[{O}:{O+3}]")
            if t == 0 and not early: group()
    C("V phase: p = bf16(exp(s - m) / l), o += p V")
    spread(512, R, 512 + R - 1 + RD - st["last"], 2)
    vhead()
    for j in range(128, 128 + RG): vstep(j)
    assert st["last"] == 512 + R - 1 + RD
    st["known"] = min(st["known"], st["last"] - pat[st["last"] % len(pat)])
    r0 = rel()
    A(f"s_mov_b32 s{sCnt}, {NIT-1-NE}")
    LBL(L("vloop"))
    vhead()
    for j in range(128 + RG, 128 + 2 * RG): vstep(j)
    A(f"s_sub_u32 s{sCnt}, s{sCnt}, 1")
    A(f"s_cmp_lg_u32 s{sCnt}, 0")
    A(f"s_cbranch_scc1 {L('vloop')}")
    assert rel() == r0, (rel(), r0)
    skip_iters(NIT - 2 - NE)
    if LVE:
        lv = [[int(c, 16) for c in x] for x in LVE.split(":")]
        assert RDE > max(lv[0])
        for k in range(RDE - RD): plan[cnt["c"] + 2 * k] = 2
    if WE:
        capo["w"] = WE
        for k in range(WE + 2 - RD): plan[cnt["c"] + 2 * k] = 2
    for it in range(NE):
        vhead()
        for j in range(256 - (NE - it) * RG, 256 - (NE - it - 1) * RG): vstep(j)
    assert st["last"] == 1023
    A(f"v_and_b32 v{vT[0]}, 15, v{vLane}")
    A(f"v_lshlrev_b32 v{vT[0]}, 5, v{vT[0]}")
    A(f"v_lshrrev_b32 v{vT[1]}, 4, v{vLane}")
    A(f"v_lshl_add_u32 v{vT[0]}, v{vT[1]}, 4, v{vT[0]}")
    A(f"s_lshl_b32 s55, s{sWave}, 9")
    A(f"v_add_u32 v{vT[0]}, s55, v{vT[0]}")
    A("s_mov_b32 exec_hi, 0")
    nop(2)
    A(f"ds_write_b128 v{vT[0]}, v[{O}:{O+3}] offset:{L_OP}")
    A("s_waitcnt lgkmcnt(0)")
    stamp()
    A("s_barrier")
    stamp()
    stamp_flush()
    A("s_endpgm")
    body = out[i_s0:]
    del out[i_s0:]
    fix = lambda p: p.replace("+", " ").replace("def", "")
    out.extend(x.replace("@KP@", kpol).replace("@VP@", vpol).replace("@LS@", "") for x in body)
    for i, (lo, hi, kp, vp) in enumerate(alts):
        LBL(f"L_stream{i}")
        out.extend(x.replace("@KP@", fix(kp)).replace("@VP@", fix(vp)).replace("L_kloop", f"L_kloop{i}").replace("L_vloop", f"L_vloop{i}").replace("@LS@", f"_{i}") for x in body)

    LBL(L("helper"))
    C("==== helper waves ====  LN(x), q = xn wq")
    sHW = 44
    sX, sW, sWS, sDbg, sOut = 48, 52, 64, 68, 72
    sOff = 45
    vG, vC = 2, 3
    vX4 = 8
    vXs = 12
    vXf = 16
    vMu, vMb, vDen, vRd = 24, 25, 26, 27
    vA = 28
    vAcc = 36
    hT = [40, 41, 42, 43, 44, 45, 46, 47]
    vWoff = 48
    vPO = 49
    vH = 52
    vOld = 53
    vKeep, vGo = 14, 15
    sEH = 84 if not stamps else 93
    vTog = 8
    vGres = 56
    vGc0, vGc1 = 57, 58
    vFin = 60
    vXo = 50
    W = 64
    PW = 192
    A(f"s_setprio {str(hp)[0]}")
    A(f"s_sub_u32 s{sHW}, s{sWave}, 4")
    if fe:
        A(f"s_lshr_b32 s{sB}, s2, 5")
        A(f"s_and_b32 s{sH}, s2, 31")
    if perm: A("s_mov_b32 s2, s89")
    A(f"v_lshrrev_b32 v{vG}, 4, v{vLane}")
    A(f"v_and_b32 v{vC}, 15, v{vLane}")
    A(f"v_lshlrev_b32 v{hT[0]}, 4, v{vLane}")
    A(f"s_lshl_b32 s56, s{sB}, 2")
    if not rot: A("s_mov_b32 s56, 0")
    A(f"v_add_u32 v{hT[1]}, s56, v{vC}")
    A(f"v_add_u32 v{hT[2]}, 16, v{hT[1]}")
    A(f"v_and_b32 v{hT[1]}, 31, v{hT[1]}")
    A(f"v_and_b32 v{hT[2]}, 31, v{hT[2]}")
    A(f"v_lshlrev_b32 v{hT[1]}, 3, v{hT[1]}")
    A(f"v_lshlrev_b32 v{hT[2]}, 3, v{hT[2]}")
    A(f"v_lshl_add_u32 v{hT[1]}, v{vG}, 1, v{hT[1]}")
    A(f"v_lshl_add_u32 v{hT[2]}, v{vG}, 1, v{hT[2]}")
    A(f"s_lshl_b32 s{sOff}, s56, 15")
    A(f"v_lshlrev_b32 v{vWoff}, 4, v{vC}")
    A(f"v_lshl_add_u32 v{vWoff}, v{vG}, 13, v{vWoff}")
    A(f"v_lshlrev_b32 v{vPO}, 5, v{vC}")
    A(f"v_lshl_add_u32 v{vPO}, v{vG}, 4, v{vPO}")
    A(f"s_lshl_b32 s46, s{sB}, 10")
    A(f"s_lshl_b32 s47, s{sHW}, 8")
    A(f"s_lshl_b32 s57, s{sHW}, 20")
    A(f"s_lshl_b32 s56, s{sH}, 8")
    A(f"s_add_u32 s57, s57, s56")
    A("s_waitcnt lgkmcnt(0)")
    A(f"s_add_u32 s{sX}, s16, s46"); A(f"s_addc_u32 s{sX+1}, s17, 0")
    A(f"s_mov_b32 s{sX+2}, 1024"); A(f"s_mov_b32 s{sX+3}, 0x20000")
    A(f"s_add_u32 s{sW}, s22, s57"); A(f"s_addc_u32 s{sW+1}, s23, 0")
    A(f"s_sub_u32 s{sW+2}, 0x100000, s56"); A(f"s_mov_b32 s{sW+3}, 0x20000")
    if nowq == 1: A(f"s_mov_b32 s{sW+2}, 0")
    A(f"buffer_load_dwordx4 v[{vX4}:{vX4+3}], v{hT[0]}, s[{sX}:{sX+3}], 0 offen")
    A(f"buffer_load_ushort v{vXs}, v{hT[1]}, s[{sX}:{sX+3}], s47 offen")
    A(f"buffer_load_ushort v{vXs+1}, v{hT[2]}, s[{sX}:{sX+3}], s47 offen")
    hs = {"last": -1}
    def wq_issue(i):
        assert i == hs["last"] + 1
        if nowq != 2: A(f"buffer_load_dwordx4 v[{W+4*i}:{W+4*i+3}], v{vWoff}, s[{sW}:{sW+3}], s{sOff} offen {wpol}")
        if i < 31:
            A(f"s_add_u32 s{sOff}, s{sOff}, 32768")
            A(f"s_and_b32 s{sOff}, s{sOff}, 0xfffff")
        hs["last"] = i
    if qpf:
        A(f"s_mov_b32 s{sOut}, s22"); A(f"s_mov_b32 s{sOut+1}, s23")
        A(f"s_mov_b32 s{sOut+2}, 0x400000"); A(f"s_mov_b32 s{sOut+3}, 0x20000")
        if perm == 2:
            A("s_lshr_b32 s56, s2, 3"); A("s_lshl_b32 s56, s56, 17")
            A(f"s_lshl_b32 s57, s{sHW}, 15"); A("s_add_u32 s56, s56, s57")
            A(f"s_lshr_b32 s57, s{sH}, 2"); A("s_lshl_b32 s57, s57, 10"); A("s_add_u32 s56, s56, s57")
            for i in range(4):
                A(f"buffer_load_dwordx4 v[{PW+4*i}:{PW+4*i+3}], v{hT[0]}, s[{sOut}:{sOut+3}], s56 offen {pfpol.replace('+', ' ').replace('def', '')}")
                if i < 3: A("s_add_u32 s56, s56, 8192")
        else:
            A("s_lshl_b32 s56, s2, 14")
            A(f"s_lshl_b32 s57, s{sHW}, 12")
            A("s_add_u32 s56, s56, s57")
            for i in range(4):
                A(f"buffer_load_dwordx4 v[{PW+4*i}:{PW+4*i+3}], v{hT[0]}, s[{sOut}:{sOut+3}], s56 offen offset:{i*1024} {pfpol.replace('+', ' ').replace('def', '')}")
    else:
        for i in range(HW0): wq_issue(i)
    if fe:
        if not stamps: karg2()
        masks(hT[6], hT[7])
        A("s_waitcnt lgkmcnt(0)")
    A(f"s_lshl_b32 s56, s{sH}, 5")
    A(f"s_lshl_b32 s57, s{sHW}, 3")
    A("s_add_u32 s56, s56, s57")
    A(f"s_add_u32 s58, s{sX}, s56"); A(f"s_addc_u32 s59, s{sX+1}, 0")
    if not g1: A("s_load_dwordx2 s[76:77], s[58:59], 0")
    A("s_load_dword s78, s[34:35], 0")


    cPG, cDf, cSlot, cL4, cGl, cGo, c128, cP, cS, cG, cT, cT2, cZ, cFA, cW, cF = range(236, 252)
    cQ = 232
    sCX, sCG, sPrev, sGn, sCur, sD, sSx, sE, sMd, sDue = 4, 5, 6, 7, 8, 9, 10, 11, 12, 13
    sRng = 94
    sRd = [18, 19, 20, 21, 22, 23, 26, 27]
    def ctl_setup():
        C("bandwidth balancing (performance only, results never depend on it): progress lines per XCD")
        A(f"s_getreg_b32 s{sCX}, hwreg(HW_REG_XCC_ID)")
        A(f"s_and_b32 s{sCX}, s{sCX}, 15")
        A(f"s_mul_i32 s{sCX}, s{sCX}, 4352")
        A(f"s_add_u32 s{sCX}, s{sCX}, {WS_CX}")
        A(f"s_mov_b32 s{sCG}, {WS_CG}")
        A("s_lshr_b32 s56, s2, 3"); A("s_lshl_b32 s56, s56, 2")
        A(f"v_mov_b32 v{cSlot}, s56")
        if RB: A(f"s_sub_u32 s2, s2, {RB}")
        A(f"v_lshlrev_b32 v{cL4}, 2, v{vLane}")
        A(f"v_and_b32 v{cGl}, 7, v{vLane}")
        A(f"v_mul_u32_u24 v{cGl}, 4352, v{cGl}")
        A("s_and_b32 s56, s2, 7"); A("s_mul_i32 s56, s56, 4352")
        A(f"v_mov_b32 v{cGo}, s56")
        A(f"v_mov_b32 v{c128}, 128")
        for r in (cPG, cDf, cS, cG, cZ, cF): A(f"v_mov_b32 v{r}, 0")
        A(f"v_mov_b32 v{cFA}, {L_FL}")
        A(f"s_mov_b32 s{sGn}, {gn - 1}")
        A(f"s_mov_b32 s{sRng}, 1536")
    def ctl_init():
        A(f"s_cmp_lg_u32 s{sHW}, {CK}")
        A(f"s_cbranch_scc1 {L('cinit_done')}")
        A("s_mov_b64 exec, 1")
        A(f"buffer_store_dword v{cZ}, v{cSlot}, s[{sWS}:{sWS+3}], s{sCX} offen")
        A("s_cmp_ge_u32 s2, 8")
        A(f"s_cbranch_scc1 {L('cinit_done')}")
        A(f"buffer_store_dword v{cZ}, v{c128}, s[{sWS}:{sWS+3}], s{sCX} offen")
        LBL(L("cinit_done"))
        A("s_mov_b64 exec, -1")
    def ctl_loop(tag, wave, lim, adv, bar=False):
        C("balancing loop: compare own progress with the other workgroups, choose the load window")
        A(f"s_cmp_lg_u32 s{sHW}, {wave}")
        A(f"s_cbranch_scc1 {L('cskip' + tag)}")
        A(f"v_lshlrev_b32 v{cT}, 3, v{vLane}")
        if tag == "v":
            A("s_mov_b64 exec, 0xff")
            A(f"ds_read_b64 v[{cPG}:{cDf}], v{cT} offset:{L_HO}")
        A("s_mov_b64 exec, 1")
        A(f"ds_read_b128 v[{cQ}:{cQ+3}], v{cZ} offset:{L_PR}")
        A("s_waitcnt lgkmcnt(0)")
        A(f"v_add_u32 v{cQ}, v{cQ}, v{cQ+1}"); A(f"v_add3_u32 v{cP}, v{cQ}, v{cQ+2}, v{cQ+3}")
        nop(1)
        A(f"v_readfirstlane_b32 s{sPrev}, v{cP}")
        LBL(L("cloop" + tag))
        A(f"s_sleep {slp}")
        if pw:
            A("s_mov_b64 exec, 15")
            A(f"ds_read_b32 v{cW}, v{cL4} offset:{L_PR}")
        A("s_mov_b64 exec, 1")
        A(f"ds_read_b128 v[{cQ}:{cQ+3}], v{cZ} offset:{L_PR}")
        A("s_waitcnt lgkmcnt(0)")
        A(f"v_add_u32 v{cQ}, v{cQ}, v{cQ+1}"); A(f"v_add3_u32 v{cP}, v{cQ}, v{cQ+2}, v{cQ+3}")
        nop(1)
        A(f"v_readfirstlane_b32 s{sCur}, v{cP}")
        nop(0)
        A(f"s_cmp_ge_u32 s{sCur}, {lim}")
        A(f"s_cbranch_scc1 {L('cexit' + tag)}")
        A(f"buffer_store_dword v{cP}, v{cSlot}, s[{sWS}:{sWS+3}], s{sCX} offen")
        A("s_mov_b32 exec_lo, -1"); A("s_mov_b32 exec_hi, 1")
        A(f"buffer_load_dword v{cS}, v{cL4}, s[{sWS}:{sWS+3}], s{sCX} offen sc1")
        A(f"s_add_u32 s{sGn}, s{sGn}, 1");
        if gn1 and tag == "k":
            A(f"s_cmp_lt_u32 s{sCur}, {4 * G1X}"); A(f"s_cselect_b32 s56, {gn1}, {gn}")
            A(f"s_cmp_ge_u32 s{sGn}, s56")
        elif gn2 and tag == "v":
            A(f"s_cmp_ge_u32 s{sCur}, {4 * (256 - GX)}"); A(f"s_cselect_b32 s56, {gn2}, {gn}")
            A(f"s_cmp_ge_u32 s{sGn}, s56")
        else: A(f"s_cmp_ge_u32 s{sGn}, {gn}")
        A(f"s_cselect_b32 s{sGn}, 0, s{sGn}")
        A("s_cmp_ge_u32 s2, 8")
        A(f"s_cbranch_scc1 {L('cn1' + tag)}")
        A("s_mov_b64 exec, 0xff")
        A(f"buffer_load_dword v{cG}, v{cGl}, s[{sWS}:{sWS+3}], s{sCG} offen sc1")
        LBL(L("cn1" + tag))
        A("s_mov_b64 exec, -1")
        A(f"s_sub_i32 s56, s{sCur}, {clamp}"); A(f"s_add_i32 s57, s{sCur}, {clamp}")
        A(f"v_mov_b32 v{cT}, s57")
        if pw:
            A(f"v_lshlrev_b32 v{cW}, 2, v{cW}")
            A(f"v_subrev_u32 v{cW}, s{sCur}, v{cW}")
            A(f"v_ashrrev_i32 v{cF}, 1, v{cF}")
            A(f"v_add_u32 v{cF}, v{cF}, v{cW}")
            A(f"v_mul_i32_i24 v{cW}, {pw}, v{cF}")
        A("s_waitcnt vmcnt(0)")
        A(f"v_readlane_b32 s{sD}, v{cS}, 32")
        A(f"v_med3_i32 v{cS}, v{cS}, s56, v{cT}")
        for r in (8, 4, 2, 1):
            nop(1); A(f"v_add_u32_dpp v{cS}, v{cS}, v{cS} row_ror:{r} row_mask:0xf bank_mask:0xf")
        nop(0)
        A(f"v_readlane_b32 s{sSx}, v{cS}, 0"); A(f"v_readlane_b32 s56, v{cS}, 16")
        nop(3)
        A(f"s_add_u32 s{sSx}, s{sSx}, s56")
        A("s_cmp_ge_u32 s2, 8")
        A(f"s_cbranch_scc1 {L('cn2' + tag)}")
        A(f"v_cmp_ne_u32 vcc, v{cG}, v{cPG}")
        A(f"v_sub_u32 v{cT}, s{sSx}, v{cG}")
        A(f"v_subrev_u32 v{cT}, {gbias}, v{cT}")
        A(f"v_add_u32 v{cT2}, 768, v{cT}")
        A(f"v_cmp_gt_u32 s[56:57], s{sRng}, v{cT2}")
        A("s_and_b64 vcc, vcc, s[56:57]")
        A(f"v_cndmask_b32 v{cDf}, v{cDf}, v{cT}, vcc")
        A(f"v_mov_b32 v{cPG}, v{cG}")
        A(f"v_writelane_b32 v{cDf}, 0, s2")
        nop(0)
        for i in range(8): A(f"v_readlane_b32 s{sRd[i]}, v{cDf}, {i}")
        nop(3)
        for i in range(1, 8): A(f"s_add_u32 s{sRd[0]}, s{sRd[0]}, s{sRd[i]}")
        A(f"s_ashr_i32 s{sD}, s{sRd[0]}, {dsh}")
        A("s_mov_b64 exec, 1")
        A(f"v_mov_b32 v{cT}, s{sSx}"); A(f"v_mov_b32 v{cT2}, s{sD}")
        A(f"buffer_store_dword v{cT2}, v{c128}, s[{sWS}:{sWS+3}], s{sCX} offen")
        A(f"s_cmp_lg_u32 s{sGn}, 0")
        A(f"s_cbranch_scc1 {L('cn2' + tag)}")
        A(f"buffer_store_dword v{cT}, v{cGo}, s[{sWS}:{sWS+3}], s{sCG} offen sc1")
        LBL(L("cn2" + tag))
        A(f"s_add_u32 s{sE}, s{sCur}, s{sPrev}"); A(f"s_lshl_b32 s{sE}, s{sE}, 4")
        A(f"s_sub_i32 s{sE}, s{sE}, s{sSx}")
        A(f"s_add_i32 s{sE}, s{sE}, s{sD}")
        A(f"s_mov_b32 s{sPrev}, s{sCur}")
        if BX and tag == "k":
            A(f"s_cmp_lt_u32 s{sCur}, {4 * BXL}"); A(f"s_cselect_b32 s56, {BX}, 0")
            A(f"s_sub_i32 s{sE}, s{sE}, s56")
        A(f"s_mov_b32 s{sMd}, 1")
        A(f"s_cmp_gt_i32 s{sE}, {bias+theta}"); A(f"s_cselect_b32 s{sMd}, 2, s{sMd}")
        A(f"s_cmp_lt_i32 s{sE}, {bias-theta}"); A(f"s_cselect_b32 s{sMd}, 0, s{sMd}")
        if prop:
            A("s_mov_b64 exec, 15")
            A(f"s_add_i32 s56, s{sE}, {prop * 13 // 2 - pc}")
            A(f"v_add_u32 v{cW}, s56, v{cW}")
            A(f"v_med3_i32 v{cW}, v{cW}, 0, s{sRng}")
            A(f"v_mul_u32_u24 v{cW}, {65536 // prop}, v{cW}")
            A(f"v_lshrrev_b32 v{cW}, 16, v{cW}")
            A(f"v_min_u32 v{cW}, 8, v{cW}")
            A(f"ds_write_b32 v{cL4}, v{cW} offset:{L_FL}")
        elif pw:
            A("s_mov_b64 exec, 15")
            A(f"v_add_u32 v{cW}, s{sE}, v{cW}")
            A(f"v_cmp_lt_i32 vcc, {bias+theta}, v{cW}")
            A(f"v_mov_b32 v{cT}, 1")
            nop(0)
            A(f"v_cndmask_b32 v{cT}, v{cT}, 2, vcc")
            A(f"v_cmp_gt_i32 vcc, {bias-theta}, v{cW}")
            nop(1)
            A(f"v_cndmask_b32 v{cT}, v{cT}, 0, vcc")
            A(f"ds_write_b32 v{cL4}, v{cT} offset:{L_FL}")
        else:
            A("s_mov_b64 exec, 1")
            A(f"v_mov_b32 v{cT}, s{sMd}")
            A(f"ds_write_b32 v{cFA}, v{cT}")
        if stamps:
            A("s_add_u32 s14, s14, 1")
            A(f"s_cmp_eq_u32 s{sMd}, 0"); A("s_addc_u32 s15, s15, 0")
            A(f"s_cmp_eq_u32 s{sMd}, 2"); A("s_addc_u32 s13, s13, 0")
        A(f"s_branch {L('cloop' + tag)}")
        LBL(L("cexit" + tag))
        A(f"v_add_u32 v{cP}, {adv}, v{cP}")
        A(f"buffer_store_dword v{cP}, v{cSlot}, s[{sWS}:{sWS+3}], s{sCX} offen")
        if tag == "k":
            A("s_mov_b64 exec, 0xff")
            A(f"v_lshlrev_b32 v{cT}, 3, v{vLane}")
            A(f"ds_write_b64 v{cT}, v[{cPG}:{cDf}] offset:{L_HO}")
        A("s_mov_b64 exec, -1")
        if stamps:
            A(f"v_writelane_b32 v{vSt}, s14, 56"); A(f"v_writelane_b32 v{vSt}, s15, 57"); A(f"v_writelane_b32 v{vSt}, s13, 58")
        if bar:
            A("s_waitcnt lgkmcnt(0)")
            A("s_barrier")
        LBL(L("cskip" + tag))

    def unpack8(src, dst):
        for i in range(4):
            A(f"v_lshlrev_b32 v{dst+2*i}, 16, v{src+i}")
            A(f"v_and_b32 v{dst+2*i+1}, 0xffff0000, v{src+i}")
    def ln_stats(xf, mb, den, rd):
        t0, t1, t2 = hT[0], hT[1], hT[2]
        A(f"v_add_f32 v{t0}, v{xf}, v{xf+1}")
        A(f"v_add_f32 v{t1}, v{xf+2}, v{xf+3}")
        A(f"v_add_f32 v{t2}, v{xf+4}, v{xf+5}")
        A(f"v_add_f32 v{t0}, v{t0}, v{t1}")
        A(f"v_add_f32 v{t1}, v{xf+6}, v{xf+7}")
        A(f"v_add_f32 v{t1}, v{t1}, v{t2}")
        A(f"v_add_f32 v{t0}, v{t0}, v{t1}")
        wave_reduce(t0, "add", vMu)
        A(f"v_mul_f32 v{vMu}, {f32(1/512)}, v{vMu}")
        A(f"v_sub_f32 v{t1}, v{xf}, v{vMu}")
        A(f"v_mul_f32 v{t0}, v{t1}, v{t1}")
        for i in range(1, 8):
            A(f"v_sub_f32 v{t1}, v{xf+i}, v{vMu}")
            A(f"v_fma_f32 v{t0}, v{t1}, v{t1}, v{t0}")
        wave_reduce(t0, "add", den)
        A(f"v_mul_f32 v{den}, {f32(1/512)}, v{den}")
        rbf(mb, vMu)
        rbf(den, den)
        A(f"v_add_f32 v{den}, {f32(1e-5)}, v{den}")
        rbf(den, den)
        A(f"v_sqrt_f32 v{den}, v{den}")
        nop(0)
        rbf(den, den)
        A(f"v_rcp_f32 v{rd}, v{den}")
        nop(0)
    def ln_apply(v, mb, den, rd, tmp):
        A(f"v_sub_f32 v{v}, v{v}, v{mb}")
        rbf(v, v)
        A(f"v_mul_f32 v{tmp}, v{v}, v{rd}")
        A(f"v_fma_f32 v{v}, -v{tmp}, v{den}, v{v}")
        A(f"v_fma_f32 v{v}, v{v}, v{rd}, v{tmp}")

    stamp()
    A(f"s_waitcnt vmcnt({0 if qpf == 1 else 6 if qpf else HW0+2})")
    stamp()
    if qpf == 1:
        for i in range(HW0): wq_issue(i)
    unpack8(vX4, vXf)
    ln_stats(vXf, vMb, vDen, vRd)
    if qpf == 2:
        A("s_waitcnt vmcnt(0)")
        for i in range(HW0): wq_issue(i)
    A(f"s_waitcnt vmcnt({HW0})")
    for k in range(2):
        A(f"v_lshlrev_b32 v{vXs+k}, 16, v{vXs+k}")
        ln_apply(vXs + k, vMb, vDen, vRd, hT[0])
        A(f"v_cvt_pk_bf16_f32 v{vXs+k}, v{vXs+k}, v{vXs+k}")
    nop(1)
    def diag_matvec(src, waits):
        def mkA(i):
            for m in range(4):
                A(f"v_and_b32_dpp v{vA+4*(i&1)+m}, v{src+(i>>4)}, v{vMask[m]} row_newbcast:{i&15} row_mask:0xf bank_mask:0xf")
        mkA(0)
        for i in range(32):
            if i < 31: mkA(i + 1)
            else: nop(1)
            if waits:
                A(f"s_waitcnt vmcnt({hs['last']-i})")
                for _ in range(2):
                    if hs["last"] < min(i + HT, 31): wq_issue(hs["last"] + 1)
            c = "0" if i == 0 else f"v[{vAcc}:{vAcc+3}]"
            a = vA + 4 * (i & 1)
            A(f"v_mfma_f32_16x16x32_bf16 v[{vAcc}:{vAcc+3}], v[{a}:{a+3}], v[{W+4*i}:{W+4*i+3}], {c}")
    stamp()
    diag_matvec(vXs, True)
    stamp()
    A(f"s_lshl_b32 s56, s{sHW}, 9")
    A(f"v_add_u32 v{hT[0]}, s56, v{vPO}")
    A("s_mov_b32 exec_hi, 0")
    nop(5)
    A(f"ds_write_b128 v{hT[0]}, v[{vAcc}:{vAcc+3}] offset:{L_QP}")
    A("s_mov_b32 exec_hi, -1")
    A("s_waitcnt lgkmcnt(0)")
    A("s_barrier")
    stamp()
    if str(hp)[3] != str(hp)[0]: A(f"s_setprio {str(hp)[3]}")
    def poll_issue(r):
        A("s_mov_b32 s56, s79")
        for i in range(4):
            A(f"buffer_load_dwordx4 v[{r+4*i}:{r+4*i+3}], v{vGo}, s[{sWS}:{sWS+3}], s56 offen sc1")
            if i < 3: A("s_add_u32 s56, s56, 4096")
    A(f"s_mov_b32 s{sWS}, s40"); A(f"s_mov_b32 s{sWS+1}, s41")
    A(f"s_mov_b32 s{sWS+2}, {WS_BYTES}"); A(f"s_mov_b32 s{sWS+3}, 0x20000")
    A(f"s_mov_b32 s{sDbg}, s38"); A(f"s_mov_b32 s{sDbg+1}, s39")
    A(f"s_mov_b32 s{sDbg+2}, 256"); A(f"s_mov_b32 s{sDbg+3}, 0x20000")
    A(f"s_mov_b32 s{sOut}, s36"); A(f"s_mov_b32 s{sOut+1}, s37")
    A(f"s_mov_b32 s{sOut+2}, 8192"); A(f"s_mov_b32 s{sOut+3}, 0x20000")
    A(f"s_lshl_b32 s79, s{sB}, 2")
    A(f"s_add_u32 s79, s79, s{sHW}")
    A("s_lshl_b32 s79, s79, 14")
    A(f"s_lshl_b32 s80, s{sH}, 9")
    A("s_add_u32 s80, s80, s79")
    if c4:
        A(f"v_add_u32 v{vPO}, s80, v{vPO}")
    else:
        A(f"s_lshl_b32 s81, s{sB}, 11")
        A(f"s_add_u32 s81, s81, {WS_GATE}")
        A(f"s_lshl_b32 s56, s{sH}, 6")
        A("s_add_u32 s56, s56, s81")
        A("s_sub_u32 s56, s56, 512")
        A(f"v_add_u32 v{vPO}, s80, v{vPO}")
        A(f"v_mov_b32 v{vKeep}, -2")
        A("s_mov_b32 exec_lo, 0")
        A(f"v_lshl_add_u32 v{vPO}, v{vLane}, 4, s56")
        A(f"v_mov_b32 v{vKeep}, 0")
        A("s_mov_b32 exec_lo, -1")
        A(f"s_lshr_b32 s56, s{sH}, 3")
        A(f"s_cmp_eq_u32 s56, s{sHW}")
        A(f"s_cselect_b32 s{sEH}, 15, 0")
    if ctl:
        ctl_setup()
        ctl_init()
        if stamps:
            for r in (14, 15, 13): A(f"s_mov_b32 s{r}, 0")
    if c4:
        C("hand-off: published words carry the inverted low bit of the words found in the slot")
        A("s_mov_b32 exec_hi, 0")
        A(f"buffer_load_dwordx4 v[{vTog}:{vTog+3}], v{vPO}, s[{sWS}:{sWS+3}], 0 offen sc1")
        A("s_mov_b32 exec_hi, -1")
        A(f"s_lshr_b32 s83, s{sH}, 2")
        A(f"s_lshl_b32 s79, s{sH}, 14")
        A(f"s_lshl_b32 s56, s{sHW}, 7")
        A("s_add_u32 s79, s79, s56")
        A(f"s_and_b32 s81, s{sH}, 3")
        A("s_lshl_b32 s81, s81, 8")
        A(f"s_lshl_b32 s56, s{sHW}, 6")
        A("s_add_u32 s81, s81, s56")
        A(f"v_and_b32 v{hT[2]}, 7, v{vLane}")
        A(f"v_lshrrev_b32 v{hT[3]}, 3, v{vLane}")
        A(f"v_lshlrev_b32 v{vGo}, 4, v{hT[2]}")
        A(f"v_lshl_add_u32 v{vGo}, v{hT[3]}, 9, v{vGo}")
        A(f"v_lshrrev_b32 v{hT[3]}, 5, v{vLane}")
        A(f"v_bfe_u32 v{hT[4]}, v{vLane}, 4, 1")
        A(f"v_lshl_add_u32 v{hT[3]}, v{hT[4]}, 1, v{hT[3]}")
        A(f"v_lshl_add_u32 v{hT[3]}, v{hT[2]}, 2, v{hT[3]}")
        A(f"v_lshlrev_b32 v{vKeep}, 1, v{hT[3]}")
        A(f"s_cmp_lg_u32 s83, s{sB}")
        A(f"s_cbranch_scc1 {L('noold')}")
        poll_issue(W)
        A(f"buffer_load_ushort v{vXo}, v{vKeep}, s[{sX}:{sX+3}], s81 offen")
        A("s_waitcnt vmcnt(0)")
        for i in range(16): A(f"v_alignbit_b32 v{vOld}, v{W+i}, v{vOld}, 1")
        A(f"v_lshlrev_b32 v{vXo}, 16, v{vXo}")
        A(f"v_mov_b32 v{hT[0]}, 0")
        A(f"v_mov_b32 v{hT[1]}, 1")
        A("s_mov_b64 exec, 1")
        A(f"ds_add_rtn_u32 v{hT[2]}, v{hT[0]}, v{hT[1]} offset:{L_CN}")
        A(f"s_lshl_b32 s56, s{sH}, 2")
        A("s_waitcnt lgkmcnt(0)")
        A(f"v_readfirstlane_b32 s57, v{hT[2]}")
        A("s_cmp_lg_u32 s57, 3")
        A(f"s_cbranch_scc1 {L('noflag')}")
        A(f"buffer_store_dword v{hT[1]}, v{hT[0]}, s[{sDbg}:{sDbg+3}], s56 offen sc1")
        LBL(L("noflag"))
        A("s_mov_b64 exec, -1")
    else:
        A(f"s_mov_b32 exec_hi, s{sEH}")
        A(f"buffer_load_dwordx4 v[{vTog}:{vTog+3}], v{vPO}, s[{sWS}:{sWS+3}], 0 offen sc1")
        A("s_mov_b32 exec_hi, -1")
        A(f"s_lshl_b32 s82, s{sB}, 2")
        A(f"s_add_u32 s83, s82, s{sHW}")
        A(f"s_lshl_b32 s56, s{sHW}, 9")
        A("s_add_u32 s81, s81, s56")
        A(f"v_and_b32 v{hT[2]}, 31, v{vLane}")
        A(f"v_lshlrev_b32 v{vGo}, 4, v{hT[2]}")
        A(f"s_cmp_lg_u32 s83, s{sH}")
        A(f"s_cbranch_scc1 {L('noold')}")
        A(f"v_lshlrev_b32 v{hT[0]}, 4, v{vLane}")
        A(f"v_lshlrev_b32 v{hT[3]}, 3, v{hT[2]}")
        A("s_mov_b32 s56, s79")
        for i in range(16):
            A(f"buffer_load_dwordx4 v[{W+4*i}:{W+4*i+3}], v{hT[0]}, s[{sWS}:{sWS+3}], s56 offen offset:{(i%4)*1024} sc1")
            if i % 4 == 3 and i < 15: A("s_add_u32 s56, s56, 4096")
        A(f"buffer_load_dwordx4 v[{vFin}:{vFin+3}], v{vGo}, s[{sWS}:{sWS+3}], s81 offen sc1")
        A(f"buffer_load_dwordx2 v[{vXo}:{vXo+1}], v{hT[3]}, s[{sX}:{sX+3}], s47 offen")
        A("s_waitcnt vmcnt(0)")
        for i in range(64):
            o = vOld + i // 32
            A(f"v_alignbit_b32 v{o}, v{W+i}, v{o}, 1")
        for r in range(4): A(f"v_alignbit_b32 v{vOld+2}, v{vFin+r}, v{vOld+2}, 1")
        A(f"v_mov_b32 v{hT[0]}, 0")
        A(f"v_mov_b32 v{hT[1]}, 1")
        A(f"s_lshl_b32 s56, s83, 2")
        A("s_mov_b64 exec, 1")
        if not xp & 1: A(f"buffer_store_dword v{hT[1]}, v{hT[0]}, s[{sDbg}:{sDbg+3}], s56 offen sc1")
        A("s_mov_b64 exec, -1")
    LBL(L("noold"))
    def wait_prog(n, tag):
        A(f"v_mov_b32 v{hT[0]}, 0")
        LBL(L("wp" + tag))
        A(f"ds_read_b32 v{hT[1]}, v{hT[0]} offset:{L_PR}")
        A("s_waitcnt lgkmcnt(0)")
        A(f"v_readfirstlane_b32 s56, v{hT[1]}")
        A(f"s_cmp_ge_u32 s56, {n}")
        A(f"s_cbranch_scc1 {L('wpd' + tag)}")
        A("s_sleep 8")
        A(f"s_branch {L('wp' + tag)}")
        LBL(L("wpd" + tag))
    if PFS:
        ctl_loop("k", CK, 4 * (128 - XK), AK, bar=True)
        wait_prog(PFS, "a")
    if wpf:
        A(f"s_mov_b32 s{sW}, s24"); A(f"s_mov_b32 s{sW+1}, s25")
        A(f"s_mov_b32 s{sW+2}, 0x400000"); A(f"s_mov_b32 s{sW+3}, 0x20000")
        A(f"v_lshlrev_b32 v{hT[7]}, 4, v{vLane}")
        A(f"s_lshl_b32 s56, s{sH}, 17")
        A(f"s_lshl_b32 s57, s{sB}, 14")
        A("s_add_u32 s56, s56, s57")
        pp = pfpol.replace("+", " ").replace("def", "")
        if wpf == 1:
            A(f"s_lshl_b32 s57, s{sHW}, 12")
            A("s_add_u32 s56, s56, s57")
            for i in range(4):
                if i >= PFT: A(f"s_waitcnt vmcnt({PFT-1})")
                A(f"buffer_load_dwordx4 v[{W+4*i}:{W+4*i+3}], v{hT[7]}, s[{sW}:{sW+3}], s56 offen offset:{i*1024} {pp}")
            A("s_waitcnt vmcnt(0)")
        elif wpf == 3:
            A(f"s_cmp_ge_u32 s{sHW}, 2")
            A(f"s_cbranch_scc1 {L('nopf')}")
            A(f"s_lshl_b32 s57, s{sHW}, 13")
            A("s_add_u32 s56, s56, s57")
            for i in range(8):
                if i >= PFT: A(f"s_waitcnt vmcnt({PFT-1})")
                A(f"buffer_load_dwordx4 v[{W+4*i}:{W+4*i+3}], v{hT[7]}, s[{sW}:{sW+3}], s56 offen offset:{(i%4)*1024} {pp}")
                if i % 4 == 3: A("s_add_u32 s56, s56, 4096")
            A("s_waitcnt vmcnt(0)")
            LBL(L("nopf"))
        else:
            A(f"s_cmp_lg_u32 s{sHW}, 0")
            A(f"s_cbranch_scc1 {L('nopf')}")
            for i in range(16):
                if i >= PFT: A(f"s_waitcnt vmcnt({PFT-1})")
                A(f"buffer_load_dwordx4 v[{W+4*i}:{W+4*i+3}], v{hT[7]}, s[{sW}:{sW+3}], s56 offen offset:{(i%4)*1024} {pp}")
                if i % 4 == 3: A("s_add_u32 s56, s56, 4096")
            A("s_waitcnt vmcnt(0)")
            LBL(L("nopf"))
    if early and not PFS:
        ctl_loop("k", CK, 4 * (128 - XK), AK, bar=True)
    if c4:
        A(f"s_cmp_lg_u32 s83, s{sB}")
        A(f"s_cbranch_scc1 {L('nogate')}")
    elif g1:
        A(f"s_cmp_lg_u32 s{sHW}, {GW}")
        A(f"s_cbranch_scc1 {L('nogate')}")
        A(f"v_lshlrev_b32 v{hT[7]}, 1, v{vC}")
        A(f"s_lshl_b32 s56, s{sH}, 5")
        A(f"buffer_load_ushort v{vH}, v{hT[7]}, s[{sX}:{sX+3}], s56 offen")
    C("gate: g = silu(gelu(LN(xn) w1 + b1) w2 + b2) for the outputs this wave finishes")
    A(f"v_lshlrev_b32 v{hT[7]}, 3, v{vLane}")
    for a_i, ptr in enumerate((28, 30, 32)):
        A(f"s_mov_b32 s{sW}, s{ptr}"); A(f"s_mov_b32 s{sW+1}, s{ptr+1}")
        A(f"s_mov_b32 s{sW+2}, 3584"); A(f"s_mov_b32 s{sW+3}, 0x20000")
        for i in range(0 if xp & 4 else 7):
            r = PW + a_i * 14 + 2 * i
            A(f"buffer_load_dwordx2 v[{r}:{r+1}], v{hT[7]}, s[{sW}:{sW+3}], 0 offen offset:{i*512}")
    stamp()
    A(f"s_setprio {str(hp)[1]}")
    for i in range(8):
        ln_apply(vXf + i, vMb, vDen, vRd, hT[0])
        rbf(vXf + i, vXf + i)
    if c4: A(f"v_mov_b32 v{vH}, v{vXo}")
    elif g1:
        A("s_waitcnt vmcnt(21)")
        A(f"v_lshlrev_b32 v{vH}, 16, v{vH}")
    else:
        A("s_lshl_b32 s56, s76, 16"); A(f"v_mov_b32 v{vH}, s56")
        A("s_and_b32 s56, s76, 0xffff0000"); A(f"v_writelane_b32 v{vH}, s56, 1")
        A("s_lshl_b32 s56, s77, 16"); A(f"v_writelane_b32 v{vH}, s56, 2")
        A("s_and_b32 s56, s77, 0xffff0000"); A(f"v_writelane_b32 v{vH}, s56, 3")
    A("s_lshl_b32 s78, s78, 16")
    ln_apply(vH, vMb, vDen, vRd, hT[0])
    rbf(vH, vH)
    ln_stats(vXf, vMb, vDen, vRd)
    ln_apply(vH, vMb, vDen, vRd, hT[0])
    rbf(vH, vH)
    A(f"v_mov_b32 v{vGc0}, {f32(GC0)}")
    A(f"v_mov_b32 v{vGc1}, {f32(GC1)}")
    A(f"v_mov_b32 v{vGres}, 0")
    stamp()
    A("s_waitcnt vmcnt(0)")
    stamp()
    for a_i in range(3):
        for i in range(14):
            A(f"v_lshlrev_b32 v{W+a_i*28+2*i}, 16, v{PW+a_i*14+i}")
            A(f"v_and_b32 v{W+a_i*28+2*i+1}, 0xffff0000, v{PW+a_i*14+i}")
    A("s_mov_b32 s57, 0")
    LBL(L("gate"))
    u0, u1, t0, t1, pk, acc = hT[0], hT[1], hT[2], hT[3], hT[4], hT[5]
    A(f"v_readlane_b32 s58, v{vH}, s57")
    A(f"v_mov_b32 v{acc}, 0")
    nop(0)
    for i in range(14):
        w1, b1, w2 = W + 2 * i, W + 28 + 2 * i, W + 56 + 2 * i
        A(f"v_mul_f32 v{u0}, s58, v{w1}")
        A(f"v_mul_f32 v{u1}, s58, v{w1+1}")
        A(f"v_cvt_pk_bf16_f32 v{pk}, v{u0}, v{u1}")
        A(f"v_lshlrev_b32 v{u0}, 16, v{pk}")
        A(f"v_and_b32 v{u1}, 0xffff0000, v{pk}")
        A(f"v_add_f32 v{u0}, v{u0}, v{b1}")
        A(f"v_add_f32 v{u1}, v{u1}, v{b1+1}")
        A(f"v_cvt_pk_bf16_f32 v{pk}, v{u0}, v{u1}")
        A(f"v_lshlrev_b32 v{u0}, 16, v{pk}")
        A(f"v_and_b32 v{u1}, 0xffff0000, v{pk}")
        A(f"v_mul_f32 v{t0}, v{u0}, v{u0}")
        A(f"v_mul_f32 v{t1}, v{u1}, v{u1}")
        A(f"v_fma_f32 v{t0}, v{t0}, v{vGc1}, v{vGc0}")
        A(f"v_fma_f32 v{t1}, v{t1}, v{vGc1}, v{vGc0}")
        A(f"v_mul_f32 v{t0}, v{t0}, v{u0}")
        A(f"v_mul_f32 v{t1}, v{t1}, v{u1}")
        A(f"v_exp_f32 v{t0}, v{t0}")
        A(f"v_exp_f32 v{t1}, v{t1}")
        A(f"v_add_f32 v{t0}, 1.0, v{t0}")
        A(f"v_add_f32 v{t1}, 1.0, v{t1}")
        A(f"v_rcp_f32 v{t0}, v{t0}")
        A(f"v_rcp_f32 v{t1}, v{t1}")
        A(f"v_mul_f32 v{u0}, v{u0}, v{t0}")
        A(f"v_mul_f32 v{u1}, v{u1}, v{t1}")
        A(f"v_cvt_pk_bf16_f32 v{pk}, v{u0}, v{u1}")
        A(f"v_lshlrev_b32 v{u0}, 16, v{pk}")
        A(f"v_and_b32 v{u1}, 0xffff0000, v{pk}")
        A(f"v_fma_f32 v{acc}, v{u0}, v{w2}, v{acc}")
        A(f"v_fma_f32 v{acc}, v{u1}, v{w2+1}, v{acc}")
    wave_reduce(acc, "add", u0)
    rbf(u0, u0)
    A(f"v_add_f32 v{u0}, s78, v{u0}")
    rbf(u0, u0)
    A(f"v_mul_f32 v{t0}, {f32(-math.log2(math.e))}, v{u0}")
    A(f"v_exp_f32 v{t0}, v{t0}")
    nop(0)
    A(f"v_add_f32 v{t0}, 1.0, v{t0}")
    A(f"v_rcp_f32 v{t1}, v{t0}")
    nop(0)
    A(f"v_mul_f32 v{u1}, v{u0}, v{t1}")
    rbf(u1, u1)
    A(f"v_cmp_eq_u32 vcc, s57, v{vLane}")
    nop(1)
    A(f"v_cndmask_b32 v{vGres}, v{vGres}, v{u1}, vcc")
    A("s_add_u32 s57, s57, 1")
    if c4:
        A("s_and_b32 s56, s57, 8"); A("s_add_u32 s57, s57, s56")
    A(f"s_cmp_lt_u32 s57, {64 if c4 else 16 if g1 else 4}")
    A(f"s_cbranch_scc1 {L('gate')}")
    A(f"s_setprio {str(hp)[2]}")
    if c4: pass
    elif g1:
        A(f"v_lshlrev_b32 v{hT[0]}, 2, v{vLane}")
        A("s_mov_b64 exec, 0xffff")
    else:
        A(f"s_lshl_b32 s56, s{sHW}, 4")
        A(f"v_lshl_add_u32 v{hT[0]}, v{vLane}, 2, s56")
        A("s_mov_b64 exec, 15")
    if not c4:
        A(f"ds_write_b32 v{hT[0]}, v{vGres} offset:{L_G}")
        A("s_mov_b64 exec, -1")
    if g1:
        LBL(L("nogate"))
        if stamps: A("s_mov_b32 s92, 9")
    stamp()
    def wo_loads():
        wo_loads1(wpol)
        if wrep:
            A(f"s_mov_b32 s59, {wrep}")
            LBL(L("wrep"))
            wo_loads1(rpol.replace("+", " ").replace("def", ""), rmask)
            A("s_sub_u32 s59, s59, 1"); A("s_cmp_lg_u32 s59, 0"); A(f"s_cbranch_scc1 {L('wrep')}")
            wo_loads1(wpol)
    def wo_loads1(wpol, rmask=31):
        A(f"s_mov_b32 s{sW}, s24"); A(f"s_mov_b32 s{sW+1}, s25")
        A(f"s_mov_b32 s{sW+2}, 0x400000"); A(f"s_mov_b32 s{sW+3}, 0x20000")
        A(f"v_lshlrev_b32 v{vWoff}, 4, v{vC}")
        A(f"v_lshl_add_u32 v{vWoff}, v{vG}, 10, v{vWoff}")
        A(f"s_lshl_b32 s{sOff}, s{sH}, 17")
        A(f"s_lshl_b32 s56, s{sHW}, 8")
        A(f"s_add_u32 s{sOff}, s{sOff}, s56")
        if wrot: A(f"s_lshl_b32 s57, s{sB}, 13")
        for i in range(0 if nowo else 32):
            if wrot: A(f"s_add_u32 s58, s{sOff}, s57")
            if i >= WOT: A(f"s_waitcnt vmcnt({WOT-1})")
            A(f"buffer_load_dwordx4 v[{W+4*i}:{W+4*i+3}], v{vWoff}, s[{sW}:{sW+3}], s{58 if wrot else sOff} offen {wpol}")
            if wrot:
                A("s_add_u32 s57, s57, 4096"); A(f"s_and_b32 s57, s57, {(rmask & 15) * 4096 + 4095}")
                if i == 15 and rmask & 16: A(f"s_add_u32 s{sOff}, s{sOff}, 65536")
            elif i < 31: A(f"s_add_u32 s{sOff}, s{sOff}, 4096")
        A("s_waitcnt vmcnt(0)")
    def ready_poll():
        C("nothing is published before the consumers of this batch have sampled the slots")
        A(f"s_cmp_lg_u32 s{sHW}, 0")
        A(f"s_cbranch_scc1 {L('cpoll_done')}")
        A(f"s_lshl_b32 s82, s{sB}, 4")
        A(f"v_mov_b32 v{hT[0]}, 0")
        A("s_mov_b32 s57, 0")
        LBL(L("cpoll"))
        A(f"buffer_load_dwordx4 v[{hT[4]}:{hT[7]}], v{hT[0]}, s[{sDbg}:{sDbg+3}], s82 offen sc1")
        A("s_waitcnt vmcnt(0)")
        A(f"v_and_b32 v{hT[4]}, v{hT[4]}, v{hT[5]}")
        A(f"v_and_b32 v{hT[6]}, v{hT[6]}, v{hT[7]}")
        A(f"v_and_b32 v{hT[4]}, v{hT[4]}, v{hT[6]}")
        A("s_add_u32 s57, s57, 1")
        A(f"v_readfirstlane_b32 s56, v{hT[4]}")
        A("s_cmp_ge_u32 s57, 0x400000")
        A(f"s_cbranch_scc1 {L('cpoll_done')}")
        A("s_cmp_lg_u32 s56, 0")
        A(f"s_cbranch_scc1 {L('cpoll_done')}")
        A("s_sleep 32")
        A(f"s_branch {L('cpoll')}")
        LBL(L("cpoll_done"))
    if PFS: wait_prog(PFS + PFD, "b")
    if early: wo_loads()
    elif ctl:
        A(f"s_cmp_eq_u32 s{sHW}, {CK}")
        A(f"s_cbranch_scc1 {L('nowo1')}")
        wo_loads()
        if tv:
            A("s_lshl_b32 s56, s2, 21")
            A(f"s_add_u32 s{sW}, s20, s56"); A(f"s_addc_u32 s{sW+1}, s21, 0")
            A(f"s_mov_b32 s{sW+2}, 0x200000"); A(f"s_mov_b32 s{sW+3}, 0x20000")
            A(f"v_lshlrev_b32 v{hT[0]}, {tv}, v{vLane}")
            A(f"buffer_load_dword v{hT[4]}, v{hT[0]}, s[{sW}:{sW+3}], 0 offen nt")
        LBL(L("nowo1"))
        ctl_loop("k", CK, 4 * (128 - XK), AK)
    elif WOP == 0: wo_loads()
    A("s_waitcnt vmcnt(0) lgkmcnt(0)")
    for r in range(4):
        A(f"v_and_b32 v{vTog+r}, 1, v{vTog+r}")
        A(f"v_xor_b32 v{vTog+r}, 1, v{vTog+r}")
    stamp()
    if early:
        A(f"s_cmp_eq_u32 s{sHW}, {CK}")
        A(f"s_cbranch_scc1 {L('nobar2')}")
    A("s_barrier")
    if early: LBL(L("nobar2"))
    stamp()
    if early: pass
    elif ctl:
        A(f"s_cmp_lg_u32 s{sHW}, {CK}")
        A(f"s_cbranch_scc1 {L('nowo2')}")
        wo_loads()
        LBL(L("nowo2"))
    elif WOP == 1: wo_loads()
    if not xp & 1: ready_poll()
    if tout:
        A(f"s_cmp_lg_u32 s83, s{sH}")
        A(f"s_cbranch_scc1 {L('notout')}")
        A(f"v_lshlrev_b32 v{hT[0]}, 3, v{vLane}")
        A("s_add_u32 s56, s46, s47")
        A("s_mov_b32 exec_hi, 0")
        A(f"buffer_load_dwordx2 v[{hT[4]}:{hT[5]}], v{hT[0]}, s[{sOut}:{sOut+3}], s56 offen")
        A("s_mov_b32 exec_hi, -1")
        A("s_waitcnt vmcnt(0)")
        LBL(L("notout"))
    sReh = 95
    PB = W
    if reh:
        assert early and not g1
        PB = 192
        A(f"s_cmp_eq_u32 s{sHW}, 1")
        A(f"s_cselect_b32 s{sReh}, 1, 0")
        LBL(L("tail"))
    A(f"v_and_b32 v{hT[2]}, 3, v{vLane}")
    A(f"v_lshlrev_b32 v{hT[2]}, 4, v{hT[2]}")
    def gate_merge():
        A("s_mov_b32 exec_lo, 0")
        for r in range(4): A(f"v_or_b32 v{vTog+r}, v{vTog+r}, v{hT[4]+r}")
        A("s_mov_b32 exec_lo, -1")
    late = early and not g1
    if not late and not c4:
        A(f"ds_read_b128 v[{hT[4]}:{hT[7]}], v{hT[2]} offset:{L_G}")
        A("s_waitcnt lgkmcnt(0)")
        gate_merge()
    if wrot:
        A(f"s_lshl_b32 s56, s{sB}, 1")
        A(f"v_add_u32 v{hT[0]}, s56, v{vC}")
        A(f"v_and_b32 v{hT[0]}, 15, v{hT[0]}")
        A(f"v_lshlrev_b32 v{hT[0]}, 4, v{hT[0]}")
    else: A(f"v_lshlrev_b32 v{hT[0]}, 4, v{vC}")
    A(f"v_lshl_add_u32 v{hT[0]}, v{vG}, 2, v{hT[0]}")
    if reh:
        A(f"s_cmp_eq_u32 s{sReh}, 1")
        A(f"s_cbranch_scc1 {L('nobar3')}")
    if ctl: ctl_loop("v", CV, 4 * (256 - XV), AV)
    A("s_setprio 3")
    stamp()
    A("s_barrier")
    stamp()
    if reh: LBL(L("nobar3"))
    for w in range(4):
        A(f"ds_read2st64_b32 v[{vXf+2*w}:{vXf+2*w+1}], v{hT[0]} offset0:{L_OP//256+2*w} offset1:{L_OP//256+2*w+1}")
    if late:
        A(f"ds_read_b128 v[{hT[4]}:{hT[7]}], v{hT[2]} offset:{L_G}")
        A("s_waitcnt lgkmcnt(1)")
    else: A("s_waitcnt lgkmcnt(0)")
    for k in range(2):
        A(f"v_add_f32 v{vXf+k}, v{vXf+k}, v{vXf+2+k}")
        A(f"v_add_f32 v{vXf+4+k}, v{vXf+4+k}, v{vXf+6+k}")
    for k in range(2):
        A(f"v_add_f32 v{vXf+k}, v{vXf+k}, v{vXf+4+k}")
    for k in range(2):
        A(f"v_cvt_pk_bf16_f32 v{vXs+k}, v{vXf+k}, v{vXf+k}")
    nop(1)
    diag_matvec(vXs, False)
    if late:
        A("s_waitcnt lgkmcnt(0)")
        if reh:
            A(f"s_cmp_eq_u32 s{sReh}, 1")
            A(f"s_cbranch_scc1 {L('nopub0')}")
        gate_merge()
        A(f"s_mov_b32 exec_hi, s{sEH}")
        if not reh: nop(0)
    elif c4:
        A("s_mov_b32 exec_hi, 0")
        nop(6)
    else:
        A(f"s_mov_b32 exec_hi, s{sEH}")
        nop(6)
    if c4:
        for r in range(4): A(f"v_and_or_b32 v{vAcc+r}, v{vAcc+r}, -2, v{vTog+r}")
        A(f"buffer_store_dwordx4 v[{vAcc}:{vAcc+3}], v{vPO}, s[{sWS}:{sWS+3}], 0 offen sc1")
        A("s_mov_b32 exec_hi, -1")
        stamp()
        A(f"s_cmp_lg_u32 s83, s{sB}")
        A(f"s_cbranch_scc1 {L('hend')}")
        C("consumer: gather the 32 per-head partial sums, out = x + s * g")
        sets = [W + 16 * k for k in range(NS)]
        for k in range(NS):
            poll_issue(sets[k])
            if k < NS - 1 and SS: A(f"s_sleep {SS}")
        A("s_mov_b32 s57, 0")
        A("s_add_u32 s82, s46, s81")
        LBL(L("gpoll"))
        for k in range(NS):
            r = sets[k]
            for i in range(4):
                A(f"s_waitcnt vmcnt({4*(NS-1)+3-i})")
                for j in range(4): A(f"v_alignbit_b32 v{hT[1]}, v{r+4*i+j}, v{hT[1]}, 1")
                if i:
                    for j in range(4): A(f"v_add_f32 v{vAcc+j}, v{(r if i == 1 else vAcc)+j}, v{r+4*i+j}")
            A(f"v_xor_b32 v{hT[1]}, v{hT[1]}, v{vOld}")
            A(f"v_cmp_gt_u32 vcc, 0xffff0000, v{hT[1]}")
            A(f"v_permlane32_swap_b32 v{vAcc}, v{vAcc+1}")
            A(f"v_permlane32_swap_b32 v{vAcc+2}, v{vAcc+3}")
            A(f"v_add_f32 v{vAcc}, v{vAcc}, v{vAcc+1}")
            A(f"v_add_f32 v{vAcc+2}, v{vAcc+2}, v{vAcc+3}")
            A(f"s_cbranch_vccz {L('gdone')}")
            poll_issue(r)
        A("s_add_u32 s57, s57, 1")
        A("s_cmp_lt_u32 s57, 0x200000")
        A(f"s_cbranch_scc1 {L('gpoll')}")
        LBL(L("gdone"))
        nop(0)
        A(f"v_permlane16_swap_b32 v{vAcc}, v{vAcc+2}")
        A(f"v_add_f32 v{vAcc}, v{vAcc}, v{vAcc+2}")
        nop(1)
        A(f"v_add_f32_dpp v{vAcc}, v{vAcc}, v{vAcc} row_ror:8 row_mask:0xf bank_mask:0xf")
        rbf(vAcc, vAcc)
        A(f"v_mul_f32 v{vAcc}, v{vAcc}, v{vGres}")
        rbf(vAcc, vAcc)
        A(f"v_add_f32 v{vAcc}, v{vAcc}, v{vXo}")
        A(f"v_cvt_pk_bf16_f32 v{vAcc}, v{vAcc}, v{vAcc}")
        A("s_mov_b32 exec_lo, 0x00ff00ff"); A("s_mov_b32 exec_hi, 0x00ff00ff")
        A(f"buffer_store_short v{vAcc}, v{vKeep}, s[{sOut}:{sOut+3}], s82 offen")
    else:
        for r in range(4): A(f"v_and_or_b32 v{vAcc+r}, v{vAcc+r}, v{vKeep}, v{vTog+r}")
        A(f"buffer_store_dwordx4 v[{vAcc}:{vAcc+3}], v{vPO}, s[{sWS}:{sWS+3}], 0 offen sc1")
        A("s_mov_b32 exec_hi, -1")
        stamp()
        A(f"s_cmp_lg_u32 s83, s{sH}")
        if reh: LBL(L("nopub"))
        A(f"s_cbranch_scc1 {L('hend')}")
        A(f"v_lshlrev_b32 v{hT[0]}, 4, v{vLane}")
        A("s_mov_b32 s57, 0")
        if reh: A(f"s_lshl_b32 s57, s{sReh}, 22")
        LBL(L("gpoll"))
        A("s_mov_b32 s56, s79")
        A(f"buffer_load_dwordx4 v[{vFin}:{vFin+3}], v{vGo}, s[{sWS}:{sWS+3}], s81 offen sc1")
        for i in range(16):
            A(f"buffer_load_dwordx4 v[{PB+4*i}:{PB+4*i+3}], v{hT[0]}, s[{sWS}:{sWS+3}], s56 offen offset:{(i%4)*1024} sc1")
            if i % 4 == 3 and i < 15: A("s_add_u32 s56, s56, 4096")
        for i in range(16):
            A(f"s_waitcnt vmcnt({15-i})")
            if i == 0:
                for r in range(4): A(f"v_alignbit_b32 v{hT[3]}, v{vFin+r}, v{hT[3]}, 1")
                A(f"v_xor_b32 v{hT[3]}, v{hT[3]}, v{vOld+2}")
                A(f"v_or_b32 v{hT[3]}, 0x0fffffff, v{hT[3]}")
                for r in range(4): A(f"v_and_b32 v{vFin+r}, 0xffff0000, v{vFin+r}")
            for r in range(4):
                n = hT[1] + (4 * i + r) // 32
                A(f"v_alignbit_b32 v{n}, v{PB+4*i+r}, v{n}, 1")
            if i:
                for r in range(4):
                    src = f"v{PB+r}" if i == 1 else f"v{vAcc+r}"
                    A(f"v_add_f32 v{vAcc+r}, {src}, v{PB+4*i+r}")
        A(f"v_xor_b32 v{hT[1]}, v{hT[1]}, v{vOld}")
        A(f"v_xor_b32 v{hT[2]}, v{hT[2]}, v{vOld+1}")
        A(f"v_and_b32 v{hT[1]}, v{hT[1]}, v{hT[3]}")
        A(f"v_and_b32 v{hT[1]}, v{hT[1]}, v{hT[2]}")
        A(f"v_cmp_ne_u32 vcc, -1, v{hT[1]}")
        A("s_add_u32 s57, s57, 1")
        A("s_cmp_ge_u32 s57, 0x400000")
        A(f"s_cbranch_scc1 {L('gdone')}")
        nop(3)
        A(f"s_cbranch_vccnz {L('gpoll')}")
        LBL(L("gdone"))
        for r in range(4): A(f"v_mov_b32 v{hT[r]}, v{vAcc+r}")
        nop(1)
        for r in range(4): A(f"v_permlane32_swap_b32 v{hT[r]}, v{vAcc+r}")
        for r in range(4): A(f"v_add_f32 v{vAcc+r}, v{vAcc+r}, v{hT[r]}")
        for r in range(4): rbf(vAcc + r, vAcc + r)
        for r in range(4): A(f"v_mul_f32 v{vAcc+r}, v{vAcc+r}, v{vFin+r}")
        for r in range(4): rbf(vAcc + r, vAcc + r)
        A(f"v_lshlrev_b32 v{hT[0]}, 16, v{vXo}")
        A(f"v_and_b32 v{hT[1]}, 0xffff0000, v{vXo}")
        A(f"v_lshlrev_b32 v{hT[2]}, 16, v{vXo+1}")
        A(f"v_and_b32 v{hT[3]}, 0xffff0000, v{vXo+1}")
        for r in range(4): A(f"v_add_f32 v{vAcc+r}, v{vAcc+r}, v{hT[r]}")
        A(f"v_cvt_pk_bf16_f32 v{hT[4]}, v{vAcc}, v{vAcc+1}")
        A(f"v_cvt_pk_bf16_f32 v{hT[5]}, v{vAcc+2}, v{vAcc+3}")
        A(f"v_lshlrev_b32 v{hT[0]}, 3, v{vLane}")
        A("s_add_u32 s56, s46, s47")
        if reh:
            A(f"s_cmp_eq_u32 s{sReh}, 1")
            A(f"s_cbranch_scc1 {L('hend')}")
        A("s_mov_b32 exec_hi, 0")
        A(f"buffer_store_dwordx2 v[{hT[4]}:{hT[5]}], v{hT[0]}, s[{sOut}:{sOut+3}], s56 offen {opol.replace('+', ' ').replace('def', '')}")
    if stamps:
        A("s_waitcnt vmcnt(0)")
        A("s_mov_b64 exec, -1")
        stamp()
        A(f"v_writelane_b32 v{vSt}, s57, 62")
    LBL(L("hend"))
    if reh:
        A(f"s_cmp_eq_u32 s{sReh}, 1")
        A(f"s_mov_b32 s{sReh}, 0")
        A(f"s_cbranch_scc1 {L('tail')}")
    stamp_flush()
    LBL(L("end"))
    A("s_endpgm")
    if reh:
        LBL(L("nopub0"))
        A(f"s_lshr_b32 s56, s{sH}, 2")
        A(f"s_cmp_lg_u32 s56, s{sB}")
        A(f"s_branch {L('nopub')}")
        A("s_endpgm")
    return "\n".join(out)

HEADER = open("cdna_kernels/" + NAME + ".s.ref").read().split("; Override launch geometry")[0]

def full(path, **kw):
    kname = NAME + "_kernel"
    body = gen(**kw)
    s = HEADER
    s += f"; @launch grid=(256,1,1) block=(512,1,1) lds={lds_bytes(**kw)}\n"
    s += '.amdgcn_target "amdgcn-amd-amdhsa--gfx950"\n.text\n'
    s += f".globl {kname}\n.p2align 8\n.type {kname},@function\n{kname}:\n"
    s += body + "\n"
    s += f""".section .rodata,"a"
.p2align 6
.amdhsa_kernel {kname}
  .amdhsa_next_free_vgpr 256
  .amdhsa_next_free_sgpr 96
  .amdhsa_accum_offset 256
  .amdhsa_group_segment_fixed_size 0
  .amdhsa_kernarg_size 104
  .amdhsa_user_sgpr_count 2
  .amdhsa_user_sgpr_kernarg_segment_ptr 1
  .amdhsa_system_sgpr_workgroup_id_x 1
  .amdhsa_float_denorm_mode_32 3
.end_amdhsa_kernel
"""
    open(path, "w").write(s)

if __name__ == "__main__":
    kw = {}
    path = "cdna_kernels/" + NAME + ".s"
    for a in sys.argv[1:]:
        k, v = a.split("=")
        if k == "out": path = v
        else: kw[k] = int(v) if v.lstrip("-").isdigit() else v
    full(path, **kw)
```
